```python
import torch

def _softmax(x, axis=-1):
    return torch.softmax(x, dim=axis)

def _gelu(x):
    return torch.nn.functional.gelu(x, approximate='tanh')

def _silu(x):
    return torch.nn.functional.silu(x)

def _sigmoid(x):
    return torch.sigmoid(x)

def _layernorm(x, axis=-1, eps=1e-05):
    m = x.mean(dim=axis, keepdim=True)
    v = x.var(dim=axis, keepdim=True, unbiased=False)
    return (x - m) / torch.sqrt(v + eps)

def _scatter_add(tgt, idx, src, axis=0):
    return tgt.clone().index_add_(axis, idx, src)

def _segment_sum(src, seg, n):
    out = torch.zeros((n,) + src.shape[1:], dtype=src.dtype)
    return out.index_add_(0, seg, src)

def _pad(x, pw):
    flat = tuple((v for pair in reversed(pw) for v in pair))
    return torch.nn.functional.pad(x, flat)
kernel_name = 'adaLN_cond__gqa_block_cached__glu_gated_geglu__decode'

def setup_inputs():

    _w = lambda a: (lambda t: t.to(torch.bfloat16) if t.is_floating_point() else t)(torch.as_tensor(a))

    def _A_setup():
        B, Sq, D = (2, 1, 512)
        Hq, Hkv, Sk, Dh = (32, 8, 32768, 128)
        assert Hq % Hkv == 0, (Hq, Hkv)
        return {'x': _w((lambda *s: torch.randn(*s, dtype=torch.bfloat16) * 0.05)(B, Sq, D)), 'k_cache': _w((lambda *s: torch.randn(*s, dtype=torch.bfloat16) * 0.8)(B, Hkv, Sk, Dh)), 'v_cache': _w((lambda *s: torch.randn(*s, dtype=torch.bfloat16) * 3.2)(B, Hkv, Sk, Dh)), 'wq': _w((lambda *s: torch.randn(*s, dtype=torch.bfloat16) * 0.8)(D, Hq * Dh) * D ** (-0.5)), 'wo': _w((lambda *s: torch.randn(*s, dtype=torch.bfloat16) * 3.2)(Hq * Dh, D) * (Hq * Dh) ** (-0.5))}
    _A_in = _A_setup()

    def _B_setup():
        B, S, Dm, Df = (2, 1, 512, 1792)
        return {'x': _w((lambda *s: torch.randn(*s, dtype=torch.bfloat16) * 0.05)(B, S, Dm)), 'w_gate': _w((lambda *s: torch.randn(*s, dtype=torch.bfloat16) * 3.2)(Dm, Df) * Dm ** (-0.5)), 'w_up': _w((lambda *s: torch.randn(*s, dtype=torch.bfloat16) * 3.2)(Dm, Df) * Dm ** (-0.5)), 'w_down': _w((lambda *s: torch.randn(*s, dtype=torch.bfloat16) * 3.2)(Df, Dm) * Df ** (-0.5))}
    _B_in = _B_setup()
    return {'A_x': _A_in['x'], 'A_k_cache': _A_in['k_cache'], 'A_v_cache': _A_in['v_cache'], 'A_wq': _A_in['wq'], 'A_wo': _A_in['wo'], 'B_x': _B_in['x'], 'B_w_gate': _B_in['w_gate'], 'B_w_up': _B_in['w_up'], 'B_w_down': _B_in['w_down'], 'c': _w((lambda *s: torch.randn(*s, dtype=torch.bfloat16) * 0.4)(2, 512) * 8.0), 'w_mod': _w((lambda *s: torch.randn(*s, dtype=torch.bfloat16) * 0.4)(512, 6 * 512) * 512 ** (-0.5) * 8.0)}

def reference(A_x, A_k_cache, A_v_cache, A_wq, A_wo, B_x, B_w_gate, B_w_up, B_w_down, c, w_mod):

    def _A_ref(x, k_cache, v_cache, wq, wo):
        B, Sq, D = x.shape
        Hq, Dh = (32, 128)
        Hkv = k_cache.shape[1]
        rep = Hq // Hkv
        q = (lambda x, *d: x.permute(*d))((x @ wq).reshape(B, Sq, Hq, Dh), 0, 2, 1, 3)
        k = (lambda x, n, axis: torch.repeat_interleave(x, n, dim=axis))(k_cache, rep, axis=1)
        v = (lambda x, n, axis: torch.repeat_interleave(x, n, dim=axis))(v_cache, rep, axis=1)
        scores = torch.einsum('bhqd,bhkd->bhqk', q, k) * Dh ** (-0.5)
        p = _softmax(scores, axis=-1)
        o = torch.einsum('bhqk,bhkd->bhqd', p, v)
        return (lambda x, *d: x.permute(*d))(o, 0, 2, 1, 3).reshape(B, Sq, Hq * Dh) @ wo

    def _B_ref(x, w_gate, w_up, w_down):
        g = torch.einsum('bsd,df->bsf', x, w_gate)
        u = torch.einsum('bsd,df->bsf', x, w_up)
        h = _gelu(g) * u
        return torch.einsum('bsf,fd->bsd', h, w_down)
    x = A_x
    mod = (_silu(c) @ w_mod).reshape(c.shape[0], 6, 1, -1)
    sa, ca, ga, sb, cb, gb = (mod[:, 0].clone(), mod[:, 1].clone(), mod[:, 2].clone(), mod[:, 3].clone(), mod[:, 4].clone(), mod[:, 5].clone())
    h = _layernorm(x, axis=-1) * (1 + ca) + sa
    x = x + ga * _A_ref(h, A_k_cache, A_v_cache, A_wq, A_wo)
    h = _layernorm(x, axis=-1) * (1 + cb) + sb
    x = x + gb * _B_ref(h, B_w_gate, B_w_up, B_w_down)
    return x
```

```python
import re

TRANS = ("v_exp_f32","v_log_f32","v_rcp_f32","v_rsq_f32","v_sqrt_f32","v_sin_f32","v_cos_f32","v_rcp_iflag_f32")
REG_RE = re.compile(r"(?<![\w.])(-?)(?:abs\()?([vsa])(?:(\d+)|\[(\d+):(\d+)\])|(?<![\w.])(vcc|exec|m0|scc)(?:_lo|_hi)?(?![\w])")

def regs_of(op):
    out=[]
    for m in REG_RE.finditer(op):
        if m.group(6):
            n=m.group(6)
            if n=="vcc": out+= ["vcc"]
            elif n=="exec": out+=["exec"]
            elif n=="m0": out+=["m0"]
            continue
        k=m.group(2)
        if m.group(3) is not None: out.append(f"{k}{m.group(3)}")
        else: out+= [f"{k}{i}" for i in range(int(m.group(4)), int(m.group(5))+1)]
    return out

def split_ops(s):
    ops=[]; depth=0; cur=""
    for ch in s:
        if ch=="[": depth+=1
        if ch=="]": depth-=1
        if ch=="," and depth==0:
            ops.append(cur.strip()); cur=""
        else: cur+=ch
    if cur.strip(): ops.append(cur.strip())
    return ops

class Ins:
    def __init__(self, text):
        self.text=text
        t=text.split(";")[0].strip()
        self.label=None; self.kind="none"; self.wr=[]; self.rd=[]; self.target=None; self.states=1
        self.dpp=False; self.mn=""
        if not t or t.startswith("."):
            self.kind="dir"; self.states=0; return
        if t.endswith(":"):
            self.kind="label"; self.label=t[:-1]; self.states=0; return
        parts=t.split(None,1)
        mn=parts[0]; self.mn=mn
        rest=parts[1] if len(parts)>1 else ""
        ops=split_ops(rest)
        mods=""
        if ops:
            last=ops[-1].split(None,1)
            if len(last)>1 and not last[0].startswith("hwreg"):
                ops[-1]=last[0]; mods=last[1]
        self.ops=ops; self.mods=mods
        R=lambda i: regs_of(ops[i]) if i<len(ops) else []
        allfrom=lambda i: sum((regs_of(o) for o in ops[i:]),[])
        if mn=="s_nop":
            self.kind="nop"; self.states=int(ops[0],0)+1; return
        if mn.startswith("s_cbranch") or mn=="s_branch":
            self.kind="branch"; self.target=ops[0]; return
        if mn.startswith("v_mfma"):
            self.kind="mfma"; self.wr=R(0); self.A=R(1); self.B=R(2); self.C=R(3); self.rd=self.A+self.B+self.C; return
        if mn.startswith("v_"):
            self.kind="valu"
            self.dpp = ("_dpp" in mn) or ("row_" in mods) or ("quad_perm" in mods)
            base=mn.replace("_e32","").replace("_e64","").replace("_dpp","")
            self.base=base
            self.trans = base in TRANS
            self.dot = base.startswith("v_dot")
            self.perml = base.startswith("v_permlane")
            self.rdlane = base in ("v_readlane_b32","v_readfirstlane_b32")
            if self.perml:
                self.wr=R(0)+R(1); self.rd=R(0)+R(1)
            elif base.startswith("v_cmp"):
                self.wr=R(0); self.rd=allfrom(1)
            elif base in ("v_add_co_u32","v_sub_co_u32"):
                self.wr=R(0)+R(1); self.rd=allfrom(2)
            elif base in ("v_addc_co_u32",):
                self.wr=R(0)+R(1); self.rd=allfrom(2)
            else:
                self.wr=R(0); self.rd=allfrom(1)
                if base in ("v_fmac_f32","v_dot2c_f32_bf16","v_writelane_b32") or self.dpp: self.rd=self.rd+R(0)
                if base=="v_cndmask_b32" and len(ops)==3: self.rd.append("vcc")
            return
        if mn.startswith("global_") or mn.startswith("buffer_"):
            self.kind="vmem"
            if "load" in mn and "lds" not in mn:
                self.wr=R(0); self.rd=allfrom(1)
            elif "atomic" in mn:
                if "sc0" in mods: self.wr=R(0); self.rd=allfrom(1)
                else: self.rd=allfrom(0)
            else:
                self.rd=allfrom(0)
                if "store" in mn and ("x4" in mn or "x3" in mn):
                    self.wide_data = R(1) if mn.startswith("global_") else R(0)
            return
        if mn.startswith("ds_"):
            self.kind="ds"
            if "read" in mn or "rtn" in mn or "permute" in mn or "swizzle" in mn:
                self.wr=R(0); self.rd=allfrom(1)
            else: self.rd=allfrom(0)
            return
        if mn.startswith("s_"):
            self.kind="salu"
            if mn.startswith("s_cmp") or mn in ("s_waitcnt","s_barrier","s_sleep","s_setprio","s_endpgm","s_bitcmp1_b32","s_bitcmp0_b32"):
                self.rd=allfrom(0)
            else:
                self.wr=R(0); self.rd=allfrom(1)
            return
        raise ValueError("unknown instruction: "+text)

BIG=99
def need(ins, st):
    req=0
    def chk(reg, kinds, n):
        nonlocal req
        for (k,age,extra) in st.get(reg,()):
            if k in kinds:
                nn = n(extra) if callable(n) else n
                if nn-age>req: req=nn-age
    V=("valu","trans","dot")
    if ins.kind=="valu":
        for r in ins.rd:
            if r[0]=="v" and r!="vcc":
                if ins.dpp or ins.perml: chk(r,V,2)
                if ins.rdlane: chk(r,V,1)
                if not ins.trans: chk(r,("trans",),1)
                else: chk(r,("trans",),1)
                chk(r,("mfma",),8)
                if ins.dot:
                    isC = (len(ins.ops)>3 and r in regs_of(ins.ops[3])) or (ins.base=="v_dot2c_f32_bf16" and r in ins.wr)
                    notAB = r not in regs_of(ins.ops[1]) and r not in regs_of(ins.ops[2])
                    chk(r,("dot",), lambda e: 0 if (e==ins.base and isC and notAB) else 3)
                else: chk(r,("dot",),3)
            else:
                chk(r,V,2)
                if ins.base in ("v_readlane_b32","v_writelane_b32") and len(ins.ops)>2 and r in regs_of(ins.ops[2]): chk(r,V,4)
        for r in ins.wr:
            if r[0]=="v" and r!="vcc":
                chk(r,("mfma",),8); chk(r,("mfmaC",),3); chk(r,("wstore",),2)
                if ins.dot: chk(r,("dot",), lambda e: 0 if e==ins.base else 3)
                else: chk(r,("dot",),3)
    elif ins.kind=="mfma":
        for r in ins.A+ins.B:
            chk(r,("valu","trans"),2); chk(r,("dot",),3); chk(r,("mfma",),8)
        for r in ins.C:
            chk(r,("valu","trans"),2); chk(r,("dot",),3)
            chk(r,("mfma",), lambda e: 0 if e==(ins.mn,tuple(ins.C)) else 8)
        for r in ins.wr:
            if r not in ins.C:
                chk(r,("mfma",),8)
    elif ins.kind in ("vmem","ds"):
        for r in ins.rd:
            if r[0]=="v" and r!="vcc":
                chk(r,("mfma",),8); chk(r,("dot",),3); chk(r,("trans",),1)
            elif r[0]=="s": chk(r,V,5)
        for r in ins.wr:
            chk(r,("mfma",),8); chk(r,("wstore",),1); chk(r,("dot",),3)
    elif ins.kind in ("salu","branch"):
        for r in ins.rd:
            chk(r,V,1)
        if ins.kind=="branch" and "vcc" in ins.mn: chk("vcc",V,1)
    return max(req,0)

def advance(st, n):
    out={}
    for r,lst in st.items():
        l=[(k,a+n,e) for (k,a,e) in lst if a+n<12]
        if l: out[r]=l
    return out

def apply(ins, st):
    st=advance(st, ins.states)
    def put(r,k,e=None, replace=True):
        l=[x for x in st.get(r,[])] if not replace else [x for x in st.get(r,[]) if x[0] in ("wstore","mfmaC")]
        l.append((k,0,e)); st[r]=l
    if ins.kind=="valu":
        k="trans" if ins.trans else ("dot" if ins.dot else "valu")
        for r in ins.wr: put(r,k,ins.base)
    elif ins.kind=="mfma":
        for r in ins.C: put(r,"mfmaC",None,False)
        for r in ins.wr: put(r,"mfma",(ins.mn,tuple(ins.wr)))
    elif ins.kind in ("vmem","ds","salu"):
        for r in ins.wr:
            if r in st: st[r]=[x for x in st[r] if x[0] in ("wstore","mfmaC","mfma")]
        for r in getattr(ins,"wide_data",[]): put(r,"wstore",None,False)
    return st

def merge(a,b):
    out={}
    for r in set(a)|set(b):
        d={}
        for (k,age,e) in a.get(r,[])+b.get(r,[]):
            key=(k,e)
            d[key]=min(d.get(key,BIG),age)
        out[r]=[(k,age,e) for (k,e),age in d.items()]
    return out

def fix_hazards(lines):
    ins=[Ins(l) for l in lines]
    pads=[0]*len(ins)
    for it in range(12):
        snaps=getattr(fix_hazards,"_s",None)
        changed=False
        snap={}
        for rnd in range(4):
            st={}; dead=False
            for i,x in enumerate(ins):
                if x.kind=="label":
                    s=snap.get(x.label)
                    if dead: st=s if s is not None else {}
                    elif s is not None: st=merge(st,s)
                    dead=False
                    continue
                if x.kind=="dir": continue
                st2=advance(st,pads[i])
                if rnd==3:
                    n=need(x,st2)
                    if n>0: pads[i]+=n; changed=True; st2=advance(st2,n)
                st=apply(x,st2)
                if x.kind=="branch":
                    snap[x.target]=merge(snap.get(x.target,{}),st)
                    if x.mn=="s_branch": dead=True
                if x.mn=="s_endpgm": dead=True
        if not changed: break
    out=[]
    for x,p in zip(ins,pads):
        while p>0:
            n=min(p,16); out.append(f"    s_nop {n-1}"); p-=n
        out.append(x.text)
    return out

class Asm:
    def __init__(self): self.L=[]; self.uid=0
    def __call__(self, s):
        for line in s.split("\n"):
            line=line.strip()
            if not line: continue
            if line.endswith(":") or line.startswith(".") or line.startswith(";"): self.L.append(line)
            else: self.L.append("    "+line)
    def lab(self, p="L"):
        self.uid+=1; return f"{p}_{self.uid}"
    def text(self): return "\n".join(fix_hazards(self.L))+"\n"
```

```python
import sys, struct
sys.path.insert(0, "gen")
from asmlib import Asm

KN = "adaLN_cond__gqa_block_cached__glu_gated_geglu__decode_kernel"
def f32(x): return "0x%08x" % struct.unpack("<I", struct.pack("<f", x))[0]

EPOCH=0x0; CNT=0x1000; MODG=0x8000; QG=0x10000; X1G=0x18000; STG=0x1C000
PARTG=0x100000; BPG=0x200000; DPG=0x300000; STAMPS=0x800000
T0=0x5A
LOG2E=1.4426950408889634
L_Q=0
L_TAG=1024
L_H=1280
L_ST=2304
L_O=2560
LDS_BYTES=10752

HEADER = open("adaLN_cond__gqa_block_cached__glu_gated_geglu__decode.s.ref").read().split("; Override launch")[0]

def gen(diag=False, NSTAT=28, POLL_LIMIT=200000, pace_sleep=8):
    a=Asm()
    stampn=[0]
    def stamp(idx):
        if not diag: return
        a("s_memrealtime s[96:97]")
        a("s_waitcnt lgkmcnt(0)")
        a(f"v_writelane_b32 v255, s96, {idx}") if False else a(f"v_writelane_b32 v{STV}, s96, {idx}")
    STV=7

    def rnd_bf16_pair(dst0,dst1,s0,s1,tmp):
        a(f"v_cvt_pk_bf16_f32 {tmp}, {s0}, {s1}")
        a(f"v_lshlrev_b32 {dst0}, 16, {tmp}")
        a(f"v_and_b32 {dst1}, 0xffff0000, {tmp}")
    def rnd1(dst,src):
        a(f"v_cvt_pk_bf16_f32 {dst}, {src}, {src}")
        a(f"v_and_b32 {dst}, 0xffff0000, {dst}")
    DPPF="row_mask:0xf bank_mask:0xf"
    def red16to2(V):
        for t in range(4):
            for e in range(2): a(f"v_permlane32_swap_b32 v{V[2*t+e]}, v{V[2*(t+4)+e]}")
        for t in range(4):
            for e in range(2): a(f"v_add_f32 v{V[2*t+e]}, v{V[2*t+e]}, v{V[2*(t+4)+e]}")
        for t in range(2):
            for e in range(2): a(f"v_permlane16_swap_b32 v{V[2*t+e]}, v{V[2*(t+2)+e]}")
        for t in range(2):
            for e in range(2): a(f"v_add_f32 v{V[2*t+e]}, v{V[2*t+e]}, v{V[2*(t+2)+e]}")
        for e in range(2): a(f"v_add_f32_dpp v{V[e]}, v{V[e]}, v{V[e]} row_ror:8 row_mask:0xf bank_mask:0x3")
        for e in range(2): a(f"v_add_f32_dpp v{V[e]}, v{V[2+e]}, v{V[2+e]} row_ror:8 row_mask:0xf bank_mask:0xc")
        for m in ("quad_perm:[1,0,3,2]","quad_perm:[2,3,0,1]","row_half_mirror"):
            for e in range(2): a(f"v_add_f32_dpp v{V[e]}, v{V[e]}, v{V[e]} {m} {DPPF}")
    def poll(loads, checks, name):
        L=a.lab("POLL"+name); D=a.lab("PD"+name)
        a(f"s_mov_b32 s21, {POLL_LIMIT}")
        a(f"{L}:")
        for l in loads: a(l)
        a("s_waitcnt vmcnt(0)")
        first1=True; first0=True
        for (w0,w1) in checks:
            if first1: a(f"v_xor_b32 v2, s20, v{w1}"); first1=False
            else: a(f"v_bitop3_b32 v2, v2, v{w1}, s20 bitop3:0xf6")
            if w0 is not None:
                if first0: a(f"v_xor_b32 v3, s19, v{w0}"); first0=False
                else: a(f"v_bitop3_b32 v3, v3, v{w0}, s19 bitop3:0xf6")
        if not first0:
            a("v_and_b32 v3, 0xff, v3"); a("v_or_b32 v2, v2, v3")
        a("v_cmp_ne_u32 vcc, 0, v2")
        a(f"s_cbranch_vccz {D}")
        a("s_sub_u32 s21, s21, 1")
        a(f"s_cbranch_scc0 {L}")
        a(f"{D}:")
    def ln_stats(X, tmp):
        d=tmp+2
        a(f"v_readfirstlane_b32 s30, v{X[0]}")
        for i in range(8): a(f"v_subrev_f32 v{d+i}, s30, v{X[i]}")
        s1=tmp; s2=tmp+1
        a(f"v_add_f32 v{s1}, v{d}, v{d+1}")
        a(f"v_mul_f32 v{s2}, v{d}, v{d}")
        for i in range(1,8):
            if i>=2: a(f"v_add_f32 v{s1}, v{s1}, v{d+i}")
            a(f"v_fmac_f32 v{s2}, v{d+i}, v{d+i}")
        for m in ("quad_perm:[1,0,3,2]","quad_perm:[2,3,0,1]","row_half_mirror","row_mirror"):
            a(f"v_add_f32_dpp v{s1}, v{s1}, v{s1} {m} {DPPF}")
            a(f"v_add_f32_dpp v{s2}, v{s2}, v{s2} {m} {DPPF}")
        a(f"v_permlane16_swap_b32 v{s1}, v{s2}")
        a(f"v_add_f32 v{s1}, v{s1}, v{s2}")
        a(f"v_mov_b32 v{s2}, v{s1}")
        a(f"v_permlane32_swap_b32 v{s1}, v{s2}")
        a(f"v_add_f32 v{s1}, v{s1}, v{s2}")
        a(f"v_readlane_b32 s31, v{s1}, 0")
        a(f"v_readlane_b32 s32, v{s1}, 16")
        a(f"s_mov_b32 s33, {f32(1.0/512)}")
        a(f"v_mov_b32 v{d}, s31"); a(f"v_mov_b32 v{d+1}, s32")
        a(f"v_mul_f32 v{d}, s33, v{d}")
        a(f"v_mul_f32 v{d+1}, s33, v{d+1}")
        a(f"v_add_f32 v{s1}, s30, v{d}")
        a(f"v_fma_f32 v{s2}, -v{d}, v{d}, v{d+1}")
        a(f"v_max_f32 v{s2}, 0, v{s2}")
        rnd_bf16_pair(f"v{s1}",f"v{s2}",f"v{s1}",f"v{s2}",f"v{d}")
        a(f"v_add_f32 v{s2}, {f32(1e-5)}, v{s2}")
        rnd1(f"v{s2}",f"v{s2}")
        a(f"v_sqrt_f32 v{s2}, v{s2}")
        rnd1(f"v{s2}",f"v{s2}")
        a(f"v_rcp_f32 v{s2}, v{s2}")
    def ln_norm(X, tmp):
        t=tmp+2
        for i in range(8): a(f"v_sub_f32 v{X[i]}, v{X[i]}, v{tmp}")
        for i in range(0,8,2): rnd_bf16_pair(f"v{X[i]}",f"v{X[i+1]}",f"v{X[i]}",f"v{X[i+1]}",f"v{t+i//2}")
        for i in range(8): a(f"v_mul_f32 v{X[i]}, v{X[i]}, v{tmp+1}")
        for i in range(0,8,2): rnd_bf16_pair(f"v{X[i]}",f"v{X[i+1]}",f"v{X[i]}",f"v{X[i+1]}",f"v{t+i//2}")
    def modulate(X, OP, SH, OUT, tmp):
        for i in range(8): a(f"v_mul_f32 v{X[i]}, v{X[i]}, v{OP[i]}")
        for i in range(0,8,2): rnd_bf16_pair(f"v{X[i]}",f"v{X[i+1]}",f"v{X[i]}",f"v{X[i+1]}",f"v{tmp+i//2}")
        for i in range(8): a(f"v_add_f32 v{X[i]}, v{X[i]}, v{SH[i]}")
        for i in range(0,8,2): a(f"v_cvt_pk_bf16_f32 v{OUT[i//2]}, v{X[i]}, v{X[i+1]}")
    def unpack(dst0,dst1,src):
        a(f"v_lshlrev_b32 v{dst0}, 16, v{src}"); a(f"v_and_b32 v{dst1}, 0xffff0000, v{src}")
    def permpair(lo,hi,A,B):
        a(f"v_perm_b32 v{lo}, v{B}, v{A}, s22"); a(f"v_perm_b32 v{hi}, v{B}, v{A}, s23")

    a(f"{KN}:")
    a("s_cmp_ge_u32 s2, 256")
    a("s_cbranch_scc1 L_END")
    if diag: a("s_memrealtime s[94:95]")
    a("s_load_dwordx4 s[4:7], s[0:1], 8")
    a("s_load_dwordx2 s[8:9], s[0:1], 104")
    a("v_lshrrev_b32 v1, 6, v0")
    a("v_and_b32 v0, 63, v0")
    a("v_readfirstlane_b32 s3, v1")
    a("s_lshr_b32 s10, s2, 4")
    a("s_and_b32 s11, s2, 15")
    a("s_lshr_b32 s12, s2, 7")
    a("s_mov_b32 s22, 0x05040100"); a("s_mov_b32 s23, 0x07060302")
    a(f"s_mov_b32 s19, {T0}")
    a("s_cmp_ge_u32 s3, 4")
    a("s_cbranch_scc1 L_HELP")
    Q=8; O=24; S=56; TM=60; P=70; M=72; MB=73; LS=74; AL=75; T=76
    WK=96; WV=112; LK=128; LV=144; SL=[160,192,224]
    a("v_and_b32 v2, 3, v0"); a("v_lshlrev_b32 v2, 10, v2")
    a("v_bfe_u32 v3, v0, 2, 2"); a("v_lshl_add_u32 v1, v3, 8, v2")
    a("v_lshrrev_b32 v3, 4, v0"); a("v_lshl_add_u32 v1, v3, 4, v1")
    a("v_lshlrev_b32 v2, 4, v0")
    a("s_lshl_b32 s13, s11, 2"); a("s_add_u32 s13, s13, s3")
    a("s_lshl_b32 s14, s10, 23")
    a("s_lshl_b32 s15, s13, 12")
    a("s_waitcnt lgkmcnt(0)")
    a("s_add_u32 s4, s4, s14"); a("s_addc_u32 s5, s5, 0")
    a("s_add_u32 s6, s6, s14"); a("s_addc_u32 s7, s7, 0")
    def ldK(r):
        a("s_add_u32 s24, s4, s15"); a("s_addc_u32 s25, s5, 0")
        for s in range(4): a(f"global_load_dwordx4 v[{r+4*s}:{r+4*s+3}], v1, s[24:25] offset:{64*s} nt")
    def ldV(r):
        a("s_add_u32 s26, s6, s15"); a("s_addc_u32 s27, s7, 0")
        for j in range(4): a(f"global_load_dwordx4 v[{r+4*j}:{r+4*j+3}], v2, s[26:27] offset:{1024*j} nt")
    ldK(WK); ldV(WV)
    if diag:
        a(f"v_mov_b32 v{STV}, 0"); a(f"v_writelane_b32 v{STV}, s94, 0")
    for i in range(16): a(f"v_mov_b32 v{Q+i}, 0")
    for i in range(32): a(f"v_mov_b32 v{O+i}, 0")
    a(f"v_mov_b32 v{M}, 0xff800000"); a(f"v_mov_b32 v{MB}, 0xff800000"); a(f"v_mov_b32 v{LS}, 0")
    a("v_mov_b32 v3, 0"); a("v_mov_b32 v4, 1")
    a("s_lshl_b32 s16, s10, 2"); a("s_add_u32 s16, s16, s3"); a("s_lshl_b32 s16, s16, 8"); a(f"s_add_u32 s16, s16, {CNT}")
    a("s_add_u32 s28, s8, s16"); a("s_addc_u32 s29, s9, 0")
    a(f"s_mov_b32 s34, {f32(128**-0.5)}"); a(f"s_mov_b32 s35, {f32(LOG2E)}")
    for (k,v) in [(SL[0],SL[0]+16),(SL[1],SL[1]+16),(SL[2],SL[2]+16),(LK,LV)]:
        a(f"s_add_u32 s15, s15, {64*4096}")
        a("s_waitcnt vmcnt(4)"); ldK(k)
        a("s_waitcnt vmcnt(4)"); ldV(v)
    stamp(1)
    a("s_barrier")
    a("v_and_b32 v5, 15, v0"); a("v_lshlrev_b32 v6, 8, v5"); a("v_lshrrev_b32 v56, 4, v0"); a("v_lshl_add_u32 v6, v56, 4, v6")
    a(f"v_mov_b32 v57, {L_TAG}"); a("ds_read_b32 v58, v57")
    a("v_cmp_gt_u32 vcc, 4, v5")
    a("s_and_saveexec_b64 s[36:37], vcc")
    for s in range(4): a(f"ds_read_b128 v[{Q+4*s}:{Q+4*s+3}], v6 offset:{L_Q+64*s}")
    a("s_mov_b64 exec, s[36:37]")
    a("s_mov_b32 s18, 4")
    a("s_mov_b32 s17, 0")
    a("s_waitcnt lgkmcnt(0)")
    a("v_readfirstlane_b32 s20, v58")
    stamp(2)
    def qk(r):
        a(f"v_mfma_f32_16x16x32_bf16 v[{S}:{S+3}], v[{r}:{r+3}], v[{Q}:{Q+3}], 0")
        for s in range(1,4): a(f"v_mfma_f32_16x16x32_bf16 v[{S}:{S+3}], v[{r+4*s}:{r+4*s+3}], v[{Q+4*s}:{Q+4*s+3}], v[{S}:{S+3}]")
    def perms(r):
        for d in range(4):
            a(f"v_perm_b32 v{T+4*d}, v{r+4+d}, v{r+d}, s22")
            a(f"v_perm_b32 v{T+4*d+1}, v{r+12+d}, v{r+8+d}, s22")
            a(f"v_perm_b32 v{T+4*d+2}, v{r+4+d}, v{r+d}, s23")
            a(f"v_perm_b32 v{T+4*d+3}, v{r+12+d}, v{r+8+d}, s23")
    a("s_branch L_REGIT")
    for i,it in enumerate((2,3,5)):
        a(f"L_CP{i}:")
        for j in range(16): a(f"v_mov_b64 v[{WK+2*j}:{WK+2*j+1}], v[{SL[i]+2*j}:{SL[i]+2*j+1}]")
        if i<2: a("s_branch L_REGIT")
    a("L_REGIT:")
    a("s_mov_b32 s38, 1")
    qk(WK)
    a("s_branch L_SOFT")
    a("L_LOOP:")
    a("s_cmp_gt_u32 s17, 5"); a("s_cbranch_scc1 L_LIT")
    a("s_cmp_eq_u32 s17, 2"); a("s_cbranch_scc1 L_CP0")
    a("s_cmp_eq_u32 s17, 3"); a("s_cbranch_scc1 L_CP1")
    a("s_cmp_eq_u32 s17, 5"); a("s_cbranch_scc1 L_CP2")
    a("L_LIT:")
    a("s_waitcnt vmcnt(4)")
    qk(LK)
    a("s_mov_b32 s38, 0")
    a(f"s_add_u32 s15, s15, {64*4096}")
    a(f"s_cmp_lt_u32 s18, {NSTAT-1}"); a("s_cbranch_scc1 L_HAVE")
    a("v_readfirstlane_b32 s15, v5")
    a("s_lshl_b32 s15, s15, 2"); a("s_add_u32 s15, s15, s3"); a(f"s_add_u32 s15, s15, {NSTAT*64}")
    a("s_mov_b32 s38, 2")
    a("s_cmp_ge_u32 s15, 2048"); a("s_cbranch_scc1 L_SOFT")
    a("s_lshl_b32 s15, s15, 12")
    a("s_mov_b32 s38, 0")
    a("L_HAVE:")
    ldK(LK)
    a(f"s_cmp_lt_u32 s18, {NSTAT-2}"); a("s_cbranch_scc1 L_NOCL")
    a("s_mov_b64 exec, 1")
    a("global_atomic_add v5, v3, v4, s[28:29] sc0 sc1")
    a("s_mov_b64 exec, -1")
    a("s_mov_b32 s38, 3")
    a("L_NOCL:")
    a("s_add_u32 s18, s18, 1")
    a("L_SOFT:")
    x=[TM,TM+1,TM+2,TM+3]
    rnd_bf16_pair(f"v{x[0]}",f"v{x[1]}",f"v{S}",f"v{S+1}",f"v{TM+4}")
    rnd_bf16_pair(f"v{x[2]}",f"v{x[3]}",f"v{S+2}",f"v{S+3}",f"v{TM+5}")
    for i in range(4): a(f"v_mul_f32 v{x[i]}, s34, v{x[i]}")
    rnd_bf16_pair(f"v{x[0]}",f"v{x[1]}",f"v{x[0]}",f"v{x[1]}",f"v{TM+4}")
    rnd_bf16_pair(f"v{x[2]}",f"v{x[3]}",f"v{x[2]}",f"v{x[3]}",f"v{TM+5}")
    a(f"v_max3_f32 v{TM+4}, v{x[0]}, v{x[1]}, v{x[2]}")
    a(f"v_max3_f32 v{TM+4}, v{TM+4}, v{x[3]}, v{M}")
    a(f"v_mov_b32 v{TM+5}, v{TM+4}")
    a(f"v_permlane32_swap_b32 v{TM+4}, v{TM+5}")
    a(f"v_max_f32 v{TM+4}, v{TM+4}, v{TM+5}")
    a(f"v_mov_b32 v{TM+5}, v{TM+4}")
    a(f"v_permlane16_swap_b32 v{TM+4}, v{TM+5}")
    a(f"v_max_f32 v{M}, v{TM+4}, v{TM+5}")
    a(f"v_mul_f32 v{TM+4}, s35, v{M}")
    a(f"v_sub_f32 v{AL}, v{MB}, v{TM+4}")
    a(f"v_mov_b32 v{MB}, v{TM+4}")
    a(f"v_exp_f32 v{AL}, v{AL}")
    for i in range(4): a(f"v_fma_f32 v{x[i]}, v{x[i]}, s35, -v{MB}")
    for i in range(4): a(f"v_exp_f32 v{x[i]}, v{x[i]}")
    for i in range(0,32,2): a(f"v_pk_mul_f32 v[{O+i}:{O+i+1}], v[{O+i}:{O+i+1}], v[{AL-1}:{AL}] op_sel:[0,1] op_sel_hi:[1,1]")
    a(f"v_mul_f32 v{LS}, v{LS}, v{AL}")
    a(f"v_add_f32 v{TM+4}, v{x[0]}, v{x[1]}"); a(f"v_add_f32 v{TM+5}, v{x[2]}, v{x[3]}")
    a(f"v_cvt_pk_bf16_f32 v{P}, v{x[0]}, v{x[1]}"); a(f"v_cvt_pk_bf16_f32 v{P+1}, v{x[2]}, v{x[3]}")
    a(f"v_add_f32 v{TM+4}, v{TM+4}, v{TM+5}"); a(f"v_add_f32 v{LS}, v{LS}, v{TM+4}")
    a("s_cmp_eq_u32 s38, 1"); a("s_cbranch_scc1 L_PERMW")
    a("s_cmp_eq_u32 s38, 0"); a("s_cbranch_scc1 L_W4")
    a("s_cmp_eq_u32 s38, 3"); a("s_cbranch_scc1 L_W5")
    a("s_waitcnt vmcnt(0)")
    a("L_W4:"); a("s_waitcnt vmcnt(4)")
    a("L_W5:"); a("s_waitcnt vmcnt(5)")
    perms(LV)
    a("s_cmp_eq_u32 s38, 2"); a("s_cbranch_scc1 L_PV")
    ldV(LV)
    a("L_PV:")
    for t in range(8): a(f"v_mfma_f32_16x16x16_bf16 v[{O+4*t}:{O+4*t+3}], v[{T+2*t}:{T+2*t+1}], v[{P}:{P+1}], v[{O+4*t}:{O+4*t+3}]")
    a("s_add_u32 s17, s17, 1")
    a("s_cmp_lg_u32 s38, 2"); a("s_cbranch_scc1 L_LOOP")
    a("s_branch L_SDONE")
    a("L_PERMW:")
    perms(WV)
    a("s_branch L_PV")
    a("L_SDONE:")
    stamp(3)
    if diag: a(f"v_writelane_b32 v{STV}, s17, 62")
    a(f"v_mov_b32 v{TM}, v{LS}"); a(f"v_permlane32_swap_b32 v{LS}, v{TM}"); a(f"v_add_f32 v{LS}, v{LS}, v{TM}")
    a(f"v_mov_b32 v{TM}, v{LS}"); a(f"v_permlane16_swap_b32 v{LS}, v{TM}"); a(f"v_add_f32 v{M+1}, v{LS}, v{TM}")
    a("v_and_b32 v5, 15, v0"); a("v_lshrrev_b32 v6, 4, v0")
    a("s_lshl_b32 s14, s3, 11")
    a("v_lshlrev_b32 v56, 9, v5"); a("v_lshl_add_u32 v56, v6, 4, v56"); a("v_add_u32 v56, s14, v56")
    a("s_lshl_b32 s14, s3, 3")
    a("v_lshlrev_b32 v57, 5, v5"); a("v_add_u32 v57, s14, v57")
    a("v_cmp_gt_u32 vcc, 4, v5")
    a("s_and_saveexec_b64 s[36:37], vcc")
    for t in range(8): a(f"ds_write_b128 v56, v[{O+4*t}:{O+4*t+3}] offset:{L_O+64*t}")
    a(f"ds_write_b64 v57, v[{M}:{M+1}] offset:{L_ST}")
    a("s_mov_b64 exec, s[36:37]")
    a("s_branch L_COMB")

    a("L_HELP:")
    a("s_setprio 3")
    if diag:
        a(f"v_mov_b32 v{STV}, 0")
    a("s_load_dwordx2 s[40:41], s[0:1], 0")
    a("s_load_dwordx4 s[42:45], s[0:1], 24") if False else None
    a("s_load_dwordx4 s[44:47], s[0:1], 24")
    a("s_load_dwordx4 s[48:51], s[0:1], 48")
    a("s_load_dwordx4 s[52:55], s[0:1], 64")
    a("s_load_dwordx4 s[56:59], s[0:1], 80")
    a("v_mov_b32 v4, 0")
    a("v_lshlrev_b32 v5, 4, v0")
    a("s_waitcnt lgkmcnt(0)")
    if diag: a(f"v_writelane_b32 v{STV}, s94, 0")
    a("global_load_dword v1, v4, s[8:9] sc0 sc1")
    a("s_cmp_eq_u32 s3, 6"); a("s_cbranch_scc1 L_H2")
    a("s_cmp_eq_u32 s3, 7"); a("s_cbranch_scc1 L_TAGONLY")
    a("s_mov_b32 s13, s2")
    a("s_cmp_eq_u32 s3, 4"); a("s_cbranch_scc1 L_MOD")
    a("s_cmp_ge_u32 s2, 128"); a("s_cbranch_scc1 L_TAGONLY")
    a("s_add_u32 s13, s2, 256")
    a("s_sleep 32")
    a("L_MOD:")
    a("s_lshr_b32 s14, s13, 6")
    a("s_and_b32 s15, s13, 7"); a("s_lshl_b32 s15, s15, 3"); a("s_bfe_u32 s16, s13, 0x30003"); a("s_add_u32 s15, s15, s16")
    a("global_load_dwordx4 v[8:11], v5, s[54:55]")
    a("global_load_dwordx4 v[12:15], v5, s[54:55] offset:1024")
    a("s_lshl_b32 s16, s14, 10"); a("s_lshl_b32 s17, s15, 4"); a("s_add_u32 s16, s16, s17")
    a("s_add_u32 s24, s56, s16"); a("s_addc_u32 s25, s57, 0")
    a("s_mov_b32 s17, 49152"); a("v_mul_lo_u32 v6, v0, s17")
    W=48
    for i in range(8):
        a(f"global_load_dwordx4 v[{W+4*i}:{W+4*i+3}], v6, s[24:25] nt")
        if i<7: a("s_add_u32 s24, s24, 6144"); a("s_addc_u32 s25, s25, 0")
    a(f"s_mov_b32 s17, {f32(-LOG2E)}")
    a("s_waitcnt vmcnt(8)")
    a("v_readfirstlane_b32 s20, v1")
    for i in range(8): unpack(16+2*i,17+2*i,8+i)
    for i in range(16): a(f"v_mul_f32 v{80+i}, s17, v{16+i}")
    for i in range(16): a(f"v_exp_f32 v{80+i}, v{80+i}")
    for i in range(16): a(f"v_add_f32 v{80+i}, 1.0, v{80+i}")
    for i in range(16): a(f"v_rcp_f32 v{80+i}, v{80+i}")
    for i in range(16): a(f"v_mul_f32 v{16+i}, v{16+i}, v{80+i}")
    for i in range(8): a(f"v_cvt_pk_bf16_f32 v{8+i}, v{16+2*i}, v{17+2*i}")
    a("s_add_u32 s20, s20, 1")
    a("s_waitcnt vmcnt(0)")
    for i in range(4):
        for d in range(4): permpair(W-8+8*i+2*d, W-8+8*i+2*d+1, W+8*i+d, W+8*i+4+d)
    for i in range(4):
        for b in range(2):
            for c in range(8):
                C = "0" if i==0 else f"v{16+8*b+c}"
                a(f"v_dot2_f32_bf16 v{16+8*b+c}, v{W-8+8*i+c}, v{8+4*b+i}, {C}")
    red16to2(list(range(16,32)))
    a("v_cvt_pk_bf16_f32 v16, v16, v17"); a("v_mov_b32 v17, s20")
    a("v_lshrrev_b32 v18, 5, v0"); a("v_lshlrev_b32 v18, 11, v18")
    a("v_bfe_u32 v19, v0, 3, 2"); a("v_lshl_add_u32 v18, v19, 3, v18")
    a("s_lshl_b32 s16, s14, 12"); a("s_lshl_b32 s17, s15, 5"); a("s_add_u32 s16, s16, s17"); a(f"s_add_u32 s16, s16, {MODG}")
    a("v_add_u32 v18, s16, v18")
    a("v_and_b32 v19, 7, v0"); a("v_cmp_eq_u32 vcc, 0, v19")
    a("s_and_saveexec_b64 s[36:37], vcc")
    a("global_store_dwordx2 v18, v[16:17], s[8:9] sc1")
    a("s_mov_b64 exec, s[36:37]")
    stamp(1)
    a("s_branch L_HBAR1")
    a("L_TAGONLY:")
    a("s_waitcnt vmcnt(0)")
    a("v_readfirstlane_b32 s20, v1")
    a("s_add_u32 s20, s20, 1")
    a("s_branch L_HBAR1")
    a("L_H2:")
    a("s_lshl_b32 s14, s12, 10")
    a("s_add_u32 s24, s40, s14"); a("s_addc_u32 s25, s41, 0")
    a("global_load_dwordx4 v[8:11], v5, s[24:25]")
    a("s_and_b32 s14, s10, 7"); a("s_lshl_b32 s14, s14, 10")
    a("s_and_b32 s15, s11, 7"); a("s_lshl_b32 s15, s15, 1"); a("s_lshr_b32 s16, s11, 3"); a("s_add_u32 s15, s15, s16")
    a("s_lshl_b32 s16, s15, 6"); a("s_add_u32 s14, s14, s16")
    a("s_add_u32 s24, s44, s14"); a("s_addc_u32 s25, s45, 0")
    a("v_lshrrev_b32 v6, 2, v0"); a("v_lshlrev_b32 v6, 18, v6")
    a("v_and_b32 v12, 3, v0"); a("v_lshl_add_u32 v6, v12, 4, v6")
    WQ=120
    for i in range(32):
        a(f"global_load_dwordx4 v[{WQ+4*i}:{WQ+4*i+3}], v6, s[24:25] nt")
        if i<31: a("s_add_u32 s24, s24, 8192"); a("s_addc_u32 s25, s25, 0")
    a("s_cmp_lg_u32 s11, 0"); a("s_cbranch_scc1 L_NOZ")
    a("s_lshl_b32 s14, s10, 10"); a(f"s_add_u32 s14, s14, {CNT}")
    a("v_lshlrev_b32 v13, 8, v0"); a("v_add_u32 v13, s14, v13")
    a("s_mov_b64 exec, 15")
    a("global_store_dword v13, v4, s[8:9] sc1")
    a("s_mov_b64 exec, -1")
    a("L_NOZ:")
    a("s_waitcnt vmcnt(33)")
    a("v_readfirstlane_b32 s20, v1")
    a("s_waitcnt vmcnt(32)")
    a("s_add_u32 s20, s20, 1")
    X=list(range(16,24))
    a("s_waitcnt vmcnt(0)") if False else None
    for i in range(4): unpack(16+2*i,17+2*i,8+i)
    ln_stats(X,24); ln_norm(X,24)
    a("s_waitcnt vmcnt(0)")
    for i in range(16):
        for d in range(4): permpair(WQ-8+8*i+2*d, WQ-8+8*i+2*d+1, WQ+8*i+d, WQ+8*i+4+d)
    stamp(1)
    a("s_lshl_b32 s14, s12, 11"); a(f"s_add_u32 s14, s14, {MODG}")
    a("v_lshlrev_b32 v6, 5, v0"); a("v_add_u32 v6, s14, v6"); a("v_add_u32 v13, 0x1000, v6")
    poll(["global_load_dwordx4 v[40:43], v6, s[8:9] sc1","global_load_dwordx4 v[44:47], v6, s[8:9] offset:16 sc1",
          "global_load_dwordx4 v[48:51], v13, s[8:9] sc1","global_load_dwordx4 v[52:55], v13, s[8:9] offset:16 sc1"],
         [(None,41+2*i) for i in range(8)], "H")
    stamp(2)
    for i in range(4): unpack(56+2*i,57+2*i,40+2*i)
    for i in range(4): unpack(64+2*i,65+2*i,48+2*i)
    for i in range(8): a(f"v_add_f32 v{64+i}, 1.0, v{64+i}")
    for i in range(0,8,2): rnd_bf16_pair(f"v{64+i}",f"v{65+i}",f"v{64+i}",f"v{65+i}",f"v{40+i//2}")
    modulate(X,list(range(64,72)),list(range(56,64)),[44,45,46,47],40)
    a(f"ds_write_b128 v5, v[44:47] offset:{L_H}")
    a("v_lshrrev_b32 v6, 2, v0"); a("v_lshlrev_b32 v6, 6, v6")
    a("s_waitcnt lgkmcnt(0)")
    for i in range(4): a(f"ds_read_b128 v[{48+4*i}:{48+4*i+3}], v6 offset:{L_H+16*i}")
    a("s_waitcnt lgkmcnt(0)")
    for i in range(16):
        for c in range(8):
            C="0" if i==0 else f"v{16+c}"
            a(f"v_dot2_f32_bf16 v{16+c}, v{WQ-8+8*i+c}, v{48+i}, {C}")
    for t in range(4): a(f"v_permlane32_swap_b32 v{16+t}, v{20+t}")
    for t in range(4): a(f"v_add_f32 v{16+t}, v{16+t}, v{20+t}")
    for t in range(2): a(f"v_permlane16_swap_b32 v{16+t}, v{18+t}")
    for t in range(2): a(f"v_add_f32 v{16+t}, v{16+t}, v{18+t}")
    for m in ("row_ror:8","row_ror:4"):
        for t in range(2): a(f"v_add_f32_dpp v{16+t}, v{16+t}, v{16+t} {m} {DPPF}")
    a("v_cvt_pk_bf16_f32 v16, v16, v17"); a("v_mov_b32 v17, s20")
    a("v_and_b32 v18, 3, v0"); a("v_lshlrev_b32 v18, 5, v18"); a("v_lshrrev_b32 v19, 4, v0"); a("v_lshl_add_u32 v18, v19, 3, v18")
    a("s_lshl_b32 s14, s10, 11"); a(f"s_add_u32 s14, s14, {QG}"); a("s_lshl_b32 s16, s15, 7"); a("s_add_u32 s16, s16, s14")
    a("v_add_u32 v18, s16, v18")
    a("v_and_b32 v19, 12, v0"); a("v_cmp_eq_u32 vcc, 0, v19")
    a("s_and_saveexec_b64 s[36:37], vcc")
    a("global_store_dwordx2 v18, v[16:17], s[8:9] sc1")
    a("s_mov_b64 exec, s[36:37]")
    stamp(3)
    a("v_lshlrev_b32 v6, 5, v0"); a("v_add_u32 v6, s14, v6")
    poll(["global_load_dwordx4 v[40:43], v6, s[8:9] sc1","global_load_dwordx4 v[44:47], v6, s[8:9] offset:16 sc1"],
         [(None,41+2*i) for i in range(4)], "Q")
    a("v_mov_b32 v41, v42"); a("v_mov_b32 v42, v44"); a("v_mov_b32 v43, v46")
    a(f"ds_write_b128 v5, v[40:43] offset:{L_Q}")
    a(f"v_mov_b32 v8, {L_TAG}"); a("v_mov_b32 v9, s20")
    a("ds_write_b32 v8, v9")
    a("s_waitcnt lgkmcnt(0)")
    stamp(4)
    a("L_HBAR1:")
    a("s_barrier")
    a("s_setprio 0")
    WO=224; GU=160; DN=128; SB=112; OP=120
    def paced(l):
        a(l); a("s_waitcnt vmcnt(0)"); a(f"s_sleep {pace_sleep}")
    a("s_and_b32 s14, s10, 7"); a("s_lshl_b32 s14, s14, 2"); a("s_lshr_b32 s15, s11, 2"); a("s_add_u32 s14, s14, s15"); a("s_lshl_b32 s14, s14, 7")
    a("s_and_b32 s15, s11, 3"); a("s_lshl_b32 s15, s15, 1"); a("s_add_u32 s14, s14, s15"); a("s_lshl_b32 s14, s14, 10")
    a("s_sub_u32 s15, s3, 4"); a("s_lshl_b32 s15, s15, 8"); a("s_add_u32 s14, s14, s15")
    a("s_add_u32 s24, s46, s14"); a("s_addc_u32 s25, s47, 0")
    a("v_lshlrev_b32 v6, 2, v0")
    R=16
    for c in range(16):
        a(f"global_load_dword v{R+c}, v6, s[24:25] nt")
        a(f"global_load_dword v{R+16+c}, v6, s[24:25] offset:1024 nt")
        if c<15: a("s_add_u32 s24, s24, 8192"); a("s_addc_u32 s25, s25, 0")
        if c%4==3: a("s_waitcnt vmcnt(0)"); a(f"s_sleep {pace_sleep}")
    for i in range(16): permpair(WO+i, WO+16+i, R+2*i, R+2*i+1)
    a("s_cmp_eq_u32 s3, 4"); a("s_cbranch_scc1 L_COMBH")
    a("s_cmp_eq_u32 s3, 5"); a("s_cbranch_scc1 L_H1PRE")
    a("s_cmp_ge_u32 s2, 224"); a("s_cbranch_scc1 L_COMBH")
    a("s_and_b32 s14, s2, 7"); a("s_mul_i32 s14, s14, 28"); a("s_lshr_b32 s15, s2, 3"); a("s_add_u32 s14, s14, s15")
    a("s_lshl_b32 s15, s14, 4")
    a("s_mov_b32 s16, 28672"); a("v_mul_lo_u32 v6, v0, s16")
    for mtx,(lo,hi) in enumerate((("s48","s49"),("s50","s51"))):
        a(f"s_add_u32 s24, {lo}, s15"); a(f"s_addc_u32 s25, {hi}, 0")
        for i in range(8):
            paced(f"global_load_dwordx4 v[{R+4*i}:{R+4*i+3}], v6, s[24:25]")
            if i<7: a("s_add_u32 s24, s24, 3584"); a("s_addc_u32 s25, s25, 0")
        for i in range(4):
            for d in range(4): permpair(GU+32*mtx+8*i+2*d, GU+32*mtx+8*i+2*d+1, R+8*i+d, R+8*i+4+d)
    a("s_lshl_b32 s15, s14, 13")
    a("s_add_u32 s24, s52, s15"); a("s_addc_u32 s25, s53, 0")
    a("v_add_u32 v6, 0x1000, v5")
    for i in range(8):
        a(f"global_load_dwordx4 v[{R+4*i}:{R+4*i+3}], {'v5' if i<4 else 'v6'}, s[24:25] offset:{1024*(i%4)}")
    a("s_waitcnt vmcnt(0)")
    for i in range(4):
        for d in range(4): permpair(DN+8*i+2*d, DN+8*i+2*d+1, R+8*i+d, R+8*i+4+d)
    a("s_sub_u32 s15, s3, 6"); a("s_lshl_b32 s15, s15, 11"); a(f"s_add_u32 s15, s15, {MODG+3*4096}")
    a("v_lshlrev_b32 v6, 5, v0"); a("v_add_u32 v6, s15, v6"); a("v_add_u32 v13, 0x1000, v6")
    poll(["global_load_dwordx4 v[40:43], v6, s[8:9] sc1","global_load_dwordx4 v[44:47], v6, s[8:9] offset:16 sc1",
          "global_load_dwordx4 v[48:51], v13, s[8:9] sc1","global_load_dwordx4 v[52:55], v13, s[8:9] offset:16 sc1"],
         [(None,41+2*i) for i in range(8)], "SB")
    for i in range(4): unpack(SB+2*i,SB+1+2*i,40+2*i)
    for i in range(4): unpack(OP+2*i,OP+1+2*i,48+2*i)
    for i in range(8): a(f"v_add_f32 v{OP+i}, 1.0, v{OP+i}")
    for i in range(0,8,2): rnd_bf16_pair(f"v{OP+i}",f"v{OP+1+i}",f"v{OP+i}",f"v{OP+1+i}",f"v{40+i//2}")
    a("s_branch L_COMBH")
    a("L_H1PRE:")
    GA=112; GB=113; XV=114
    a("s_and_b32 s14, s2, 127")
    a("s_lshl_b32 s15, s12, 11"); a("s_lshl_b32 s16, s14, 4"); a("s_add_u32 s15, s15, s16"); a(f"s_add_u32 s15, s15, {MODG+2*4096}")
    a("v_and_b32 v6, 1, v0"); a("v_lshlrev_b32 v6, 3, v6"); a("v_add_u32 v6, s15, v6"); a(f"v_add_u32 v13, {3*4096}, v6")
    poll(["global_load_dwordx2 v[40:41], v6, s[8:9] sc1","global_load_dwordx2 v[42:43], v13, s[8:9] sc1"],[(None,41),(None,43)],"GA")
    a("v_lshrrev_b32 v8, 5, v0"); a("v_lshlrev_b32 v9, 4, v8"); a("v_sub_u32 v9, 16, v9")
    a(f"v_lshlrev_b32 v{GA}, v9, v40"); a(f"v_and_b32 v{GA}, 0xffff0000, v{GA}")
    a(f"v_lshlrev_b32 v{GB}, v9, v42"); a(f"v_and_b32 v{GB}, 0xffff0000, v{GB}")
    a("v_and_b32 v6, 1, v0"); a("v_lshl_add_u32 v6, v6, 1, v8")
    a("s_lshl_b32 s15, s2, 2"); a(f"v_add_u32 v115, s15, v6")
    a("v_lshlrev_b32 v6, 1, v115")
    a(f"global_load_ushort v{XV}, v6, s[40:41]")
    a("s_waitcnt vmcnt(0)")
    a(f"v_lshlrev_b32 v{XV}, 16, v{XV}")
    a("L_COMBH:")
    stamp(5)
    a("s_setprio 3")
    a("L_COMB:")
    a("s_waitcnt lgkmcnt(0)")
    a("s_barrier")
    stamp(6)
    a("s_lshr_b32 s14, s3, 1"); a("s_and_b32 s15, s3, 1")
    a("s_lshl_b32 s16, s14, 9"); a("s_lshl_b32 s17, s15, 8"); a("s_add_u32 s16, s16, s17")
    a("v_lshlrev_b32 v8, 2, v0"); a("v_add_u32 v8, s16, v8")
    a("s_lshl_b32 s16, s14, 5"); a("v_mov_b32 v9, s16")
    a(f"ds_read_b128 v[16:19], v9 offset:{L_ST}"); a(f"ds_read_b128 v[20:23], v9 offset:{L_ST+16}")
    for w in range(4): a(f"ds_read_b32 v{24+w}, v8 offset:{L_O+2048*w}")
    a(f"s_mov_b32 s35, {f32(LOG2E)}")
    a("s_lshl_b32 s16, s10, 4"); a("s_lshl_b32 s17, s14, 2"); a("s_add_u32 s16, s16, s17"); a("s_lshl_b32 s17, s15, 1"); a("s_add_u32 s16, s16, s17")
    a("s_lshl_b32 s16, s16, 4"); a("s_add_u32 s16, s16, s11"); a("s_lshl_b32 s16, s16, 8"); a(f"s_add_u32 s16, s16, {PARTG}")
    a("v_lshrrev_b32 v10, 5, v0"); a("v_lshlrev_b32 v10, 12, v10"); a("v_and_b32 v11, 31, v0"); a("v_lshl_add_u32 v10, v11, 3, v10"); a("v_add_u32 v10, s16, v10")
    a("s_lshl_b32 s16, s10, 2"); a("s_add_u32 s16, s16, s14"); a("s_lshl_b32 s16, s16, 4"); a("s_add_u32 s16, s16, s11"); a("s_lshl_b32 s16, s16, 4"); a(f"s_add_u32 s16, s16, {STG}")
    a("v_mov_b32 v11, s16")
    a("v_mov_b32 v29, s20"); a("v_mov_b32 v33, s20"); a("v_mov_b32 v35, s20")
    a("s_mov_b32 s17, 0xffffff00")
    a("s_waitcnt lgkmcnt(4)")
    a("v_max3_f32 v32, v16, v18, v20"); a("v_max_f32 v32, v32, v22")
    a("v_mul_f32 v12, s35, v32")
    for w in range(4): a(f"v_mul_f32 v{16+2*w}, s35, v{16+2*w}")
    for w in range(4): a(f"v_sub_f32 v{16+2*w}, v{16+2*w}, v12")
    for w in range(4): a(f"v_exp_f32 v{16+2*w}, v{16+2*w}")
    a("s_waitcnt lgkmcnt(0)")
    a("v_mul_f32 v28, v16, v24"); a("v_mul_f32 v34, v16, v17")
    for w in range(1,4):
        a(f"v_fmac_f32 v28, v{16+2*w}, v{24+w}"); a(f"v_fmac_f32 v34, v{16+2*w}, v{17+2*w}")
    a("v_and_b32 v28, s17, v28"); a("v_or_b32 v28, s19, v28")
    a("global_store_dwordx2 v10, v[28:29], s[8:9] sc1")
    a("s_cmp_eq_u32 s15, 0"); a("s_cbranch_scc0 L_NOST")
    a("v_and_b32 v34, s17, v34"); a("v_or_b32 v34, s19, v34"); a("v_or_b32 v32, s19, v32")
    a("s_mov_b64 exec, 1")
    a("global_store_dwordx4 v11, v[32:35], s[8:9] sc1")
    a("s_mov_b64 exec, -1")
    a("L_NOST:")
    stamp(7)
    a("s_cmp_lt_u32 s3, 4"); a("s_cbranch_scc1 L_FIN")
    a("s_lshl_b32 s14, s2, 12"); a(f"s_add_u32 s14, s14, {PARTG}")
    a("v_lshrrev_b32 v8, 5, v0"); a("v_lshlrev_b32 v9, 11, v8"); a("v_and_b32 v10, 31, v0"); a("v_lshl_add_u32 v9, v10, 3, v9"); a("v_add_u32 v9, s14, v9")
    a("s_lshl_b32 s14, s10, 2"); a("s_lshr_b32 s15, s11, 2"); a("s_add_u32 s14, s14, s15"); a("s_lshl_b32 s14, s14, 8"); a(f"s_add_u32 s14, s14, {STG}")
    a("v_and_b32 v10, 15, v0"); a("v_lshlrev_b32 v11, 3, v8"); a("v_xor_b32 v10, v10, v11"); a("v_lshlrev_b32 v10, 4, v10"); a("v_add_u32 v10, s14, v10")
    a("s_sub_u32 s14, s3, 4"); a("s_lshl_b32 s14, s14, 5"); a("s_lshl_b32 s15, s12, 7"); a("s_add_u32 s14, s14, s15"); a("s_lshl_b32 s14, s14, 12")
    a("s_and_b32 s15, s2, 127"); a("s_lshl_b32 s15, s15, 5"); a("s_add_u32 s14, s14, s15"); a(f"s_add_u32 s14, s14, {BPG}")
    a("v_lshrrev_b32 v11, 1, v0"); a("v_lshlrev_b32 v11, 12, v11"); a("v_and_b32 v12, 1, v0"); a("v_lshl_add_u32 v11, v12, 4, v11"); a("v_add_u32 v11, s14, v11")
    a("v_mov_b32 v41, s20"); a("v_mov_b32 v43, s20")
    poll(["global_load_dwordx4 v[32:35], v10, s[8:9] sc1"]+[f"global_load_dwordx2 v[{16+2*i}:{17+2*i}], v9, s[8:9] offset:{256*i} sc1" for i in range(8)],
         [(32,33),(34,35)]+[(16+2*i,17+2*i) for i in range(8)], "B")
    stamp(8)
    a("v_and_b32 v32, 0xffff0000, v32")
    a("v_mov_b32 v36, v32")
    for m in ("quad_perm:[1,0,3,2]","quad_perm:[2,3,0,1]","row_half_mirror","row_mirror"):
        a(f"v_max_f32_dpp v36, v36, v36 {m} {DPPF}")
    a("v_mul_f32 v32, s35, v32"); a("v_mul_f32 v36, s35, v36"); a("v_sub_f32 v32, v32, v36"); a("v_exp_f32 v32, v32")
    a("v_mul_f32 v34, v34, v32")
    for m in ("quad_perm:[1,0,3,2]","quad_perm:[2,3,0,1]","row_half_mirror","row_mirror"):
        a(f"v_add_f32_dpp v34, v34, v34 {m} {DPPF}")
    a("v_rcp_f32 v34, v34")
    a("v_mul_f32_dpp v36, v32, v16 row_newbcast:0 "+DPPF)
    for i in range(1,8): a(f"v_fmac_f32_dpp v36, v32, v{16+2*i} row_newbcast:{i} {DPPF}")
    a("v_mov_b32 v37, v36"); a("v_permlane32_swap_b32 v36, v37"); a("v_add_f32 v36, v36, v37")
    a("v_mul_f32 v36, v36, v34")
    a(f"v_mov_b32_dpp v37, v36 quad_perm:[1,0,3,2] {DPPF}")
    a("v_cvt_pk_bf16_f32 v36, v36, v37")
    for i in range(16): a(f"v_readlane_b32 s{60+i}, v36, {2*i}")
    for i in range(16):
        a(f"v_dot2_f32_bf16 v40, v{WO+i}, s{60+i}, {'0' if i==0 else 'v40'}")
        a(f"v_dot2_f32_bf16 v42, v{WO+16+i}, s{60+i}, {'0' if i==0 else 'v42'}")
    a("v_and_b32 v40, s17, v40"); a("v_and_b32 v42, s17, v42"); a("v_or_b32 v40, s19, v40"); a("v_or_b32 v42, s19, v42")
    a("global_store_dwordx4 v11, v[40:43], s[8:9] sc1")
    stamp(9)
    a("s_cmp_eq_u32 s3, 4"); a("s_cbranch_scc1 L_FIN")
    a("s_cmp_eq_u32 s3, 5"); a("s_cbranch_scc0 L_C")
    def colreduce(v0_,v1_,tmp):
        a(f"v_permlane32_swap_b32 v{v0_}, v{v1_}"); a(f"v_add_f32 v{v0_}, v{v0_}, v{v1_}")
        a(f"v_mov_b32 v{tmp}, v{v0_}"); a(f"v_permlane16_swap_b32 v{v0_}, v{tmp}"); a(f"v_add_f32 v{v0_}, v{v0_}, v{tmp}")
        for m in ("row_ror:8","row_ror:4","row_ror:2"): a(f"v_add_f32_dpp v{v0_}, v{v0_}, v{v0_} {m} {DPPF}")
    a("s_lshl_b32 s14, s2, 12"); a(f"s_add_u32 s14, s14, {BPG}"); a("v_add_u32 v9, s14, v5")
    a(f"v_lshlrev_b32 v10, 3, v115"); a(f"v_add_u32 v10, {X1G}, v10")
    a("v_and_b32 v12, 30, v0"); a("v_cmp_eq_u32 s[38:39], 0, v12")
    poll([f"global_load_dwordx4 v[{16+4*i}:{19+4*i}], v9, s[8:9] offset:{1024*i} sc1" for i in range(4)],
         [(16+2*i,17+2*i) for i in range(8)], "R")
    stamp(10)
    a("v_add_f32 v16, v16, v20"); a("v_add_f32 v18, v18, v22"); a("v_add_f32 v24, v24, v28"); a("v_add_f32 v26, v26, v30")
    a("v_add_f32 v16, v16, v24"); a("v_add_f32 v18, v18, v26")
    colreduce(16,18,17)
    rnd1("v16","v16"); a(f"v_mul_f32 v16, v16, v{GA}"); rnd1("v16","v16"); a(f"v_add_f32 v16, v16, v{XV}"); rnd1(f"v{XV}","v16")
    a(f"v_or_b32 v16, s19, v{XV}"); a("v_mov_b32 v17, s20")
    a("s_mov_b64 exec, s[38:39]")
    a("global_store_dwordx2 v10, v[16:17], s[8:9] sc1")
    a("s_mov_b64 exec, -1")
    stamp(11)
    a("s_mul_i32 s14, s2, 7168"); a(f"s_add_u32 s14, s14, {DPG}"); a("v_add_u32 v9, s14, v5"); a("v_add_u32 v10, 0x1000, v9")
    a("v_lshlrev_b32 v11, 1, v115")
    poll([f"global_load_dwordx4 v[{16+4*i}:{19+4*i}], {'v9' if i<4 else 'v10'}, s[8:9] offset:{1024*(i%4)} sc1" for i in range(7)],
         [(16+2*i,17+2*i) for i in range(14)], "F")
    stamp(12)
    for o in (0,2):
        a(f"v_add_f32 v{16+o}, v{16+o}, v{20+o}"); a(f"v_add_f32 v{24+o}, v{24+o}, v{28+o}"); a(f"v_add_f32 v{32+o}, v{32+o}, v{36+o}")
    for o in (0,2):
        a(f"v_add_f32 v{16+o}, v{16+o}, v{24+o}"); a(f"v_add_f32 v{32+o}, v{32+o}, v{40+o}")
    for o in (0,2): a(f"v_add_f32 v{16+o}, v{16+o}, v{32+o}")
    colreduce(16,18,17)
    rnd1("v16","v16"); a(f"v_mul_f32 v16, v16, v{GB}"); rnd1("v16","v16"); a(f"v_add_f32 v16, v16, v{XV}")
    a("v_cvt_pk_bf16_f32 v16, v16, v16")
    a("s_mov_b64 exec, s[38:39]")
    a("global_store_short v11, v16, s[58:59]")
    a("s_mov_b64 exec, -1")
    a("s_cmp_lg_u32 s2, 0"); a("s_cbranch_scc1 L_NOEP")
    a("v_mov_b32 v17, s20")
    a("s_mov_b64 exec, 1")
    a("global_store_dword v4, v17, s[8:9] sc0 sc1")
    a("s_mov_b64 exec, -1")
    a("L_NOEP:")
    stamp(13)
    a("s_branch L_FIN")
    a("L_C:")
    a("s_cmp_ge_u32 s2, 224"); a("s_cbranch_scc1 L_FIN")
    a("s_sub_u32 s14, s3, 6"); a("s_lshl_b32 s15, s14, 12"); a(f"s_add_u32 s15, s15, {X1G}")
    a("v_lshlrev_b32 v9, 6, v0"); a("v_add_u32 v9, s15, v9")
    a("s_mul_i32 s15, s14, 917504"); a("s_lshl_b32 s16, s2, 5"); a("s_add_u32 s15, s15, s16"); a(f"s_add_u32 s15, s15, {DPG}")
    a("s_mov_b32 s16, 14336"); a("v_mul_lo_u32 v10, v0, s16"); a("v_add_u32 v10, s15, v10"); a("v_add_u32 v11, 7168, v10")
    for i in range(8): a(f"v_mov_b32 v{81+2*i}, s20")
    a(f"s_mov_b32 s26, {f32(0.044715)}"); a(f"s_mov_b32 s27, {f32(-2.0*0.7978845608028654*LOG2E)}")
    poll([f"global_load_dwordx4 v[{16+4*i}:{19+4*i}], v9, s[8:9] offset:{16*i} sc1" for i in range(4)],
         [(16+2*i,17+2*i) for i in range(8)], "C")
    stamp(10)
    X=list(range(32,40))
    for i in range(8): a(f"v_and_b32 v{32+i}, 0xffff0000, v{16+2*i}")
    ln_stats(X,40); ln_norm(X,40)
    modulate(X,list(range(OP,OP+8)),list(range(SB,SB+8)),[52,53,54,55],42)
    for i in range(4):
        for t in range(8):
            for mtx in range(2):
                C="0" if i==0 else f"v{56+2*t+mtx}"
                a(f"v_dot2_f32_bf16 v{56+2*t+mtx}, v{GU+32*mtx+8*i+t}, v{52+i}, {C}")
    red16to2(list(range(56,72)))
    rnd_bf16_pair("v56","v57","v56","v57","v58")
    a("v_mul_f32 v58, v56, v56"); a("v_fma_f32 v58, v58, s26, 1.0"); a("v_mul_f32 v58, v58, v56"); a("v_mul_f32 v58, s27, v58")
    a("v_exp_f32 v58, v58"); a("v_add_f32 v58, 1.0, v58"); a("v_rcp_f32 v58, v58"); a("v_mul_f32 v58, v58, v56")
    rnd1("v58","v58"); a("v_mul_f32 v58, v58, v57")
    a(f"v_mov_b32_dpp v59, v58 row_ror:8 {DPPF}")
    a("v_cvt_pk_bf16_f32 v58, v58, v59")
    for i in range(4): a(f"v_readlane_b32 s{60+i}, v58, {16*i}")
    for i in range(4):
        for c in range(8):
            C="0" if i==0 else f"v{80+2*c}"
            a(f"v_dot2_f32_bf16 v{80+2*c}, v{DN+8*i+c}, s{60+i}, {C}")
    for c in range(8): a(f"v_and_b32 v{80+2*c}, s17, v{80+2*c}")
    for c in range(8): a(f"v_or_b32 v{80+2*c}, s19, v{80+2*c}")
    a("global_store_dwordx4 v10, v[80:83], s[8:9] sc1"); a("global_store_dwordx4 v10, v[84:87], s[8:9] offset:16 sc1")
    a("global_store_dwordx4 v11, v[88:91], s[8:9] sc1"); a("global_store_dwordx4 v11, v[92:95], s[8:9] offset:16 sc1")
    stamp(11)
    a("L_FIN:")
    if diag:
        a("s_getreg_b32 s14, hwreg(HW_REG_XCC_ID)"); a(f"v_writelane_b32 v{STV}, s14, 63")
        a("s_lshl_b32 s14, s2, 3"); a("s_add_u32 s14, s14, s3"); a("s_lshl_b32 s14, s14, 8"); a(f"s_add_u32 s14, s14, {STAMPS}")
        a("v_lshlrev_b32 v8, 2, v0"); a("v_add_u32 v8, s14, v8")
        a(f"global_store_dword v8, v{STV}, s[8:9]")
    a("L_END:")
    a("s_endpgm")
    body=a.text()
    out=HEADER+"; Generated by gen/gen.py (own generator script).\n"
    out+=f"; @launch grid=(256,1,1) block=(512,1,1) lds={LDS_BYTES}\n"
    out+='.amdgcn_target "amdgcn-amd-amdhsa--gfx950"\n.text\n'
    out+=f".globl {KN}\n.p2align 8\n.type {KN},@function\n"+body
    out+=f'''.section .rodata,"a"
.p2align 6
.amdhsa_kernel {KN}
  .amdhsa_next_free_vgpr 256
  .amdhsa_next_free_sgpr 102
  .amdhsa_accum_offset 256
  .amdhsa_group_segment_fixed_size 0
  .amdhsa_kernarg_size 112
  .amdhsa_user_sgpr_count 2
  .amdhsa_user_sgpr_kernarg_segment_ptr 1
  .amdhsa_system_sgpr_workgroup_id_x 1
  .amdhsa_float_denorm_mode_32 3
.end_amdhsa_kernel
'''
    return out

if __name__=="__main__":
    import argparse
    ap=argparse.ArgumentParser(); ap.add_argument("out"); ap.add_argument("--diag",action="store_true"); ap.add_argument("--opt",default="")
    args=ap.parse_args()
    kw=eval("dict("+args.opt+")")
    open(args.out,"w").write(gen(diag=args.diag,**kw))
```

```python
import sys, struct
sys.path.insert(0, "gen")
from asmlib import Asm

KN = "adaLN_cond__gqa_block_cached__glu_gated_geglu__decode_kernel"
def f32(x): return "0x%08x" % struct.unpack("<I", struct.pack("<f", x))[0]

EPOCH=0x0; CNT=0x1000; MODG=0xA000; QG=0x10000; X1G=0x20000; STG=0x40000
PARTG=0x100000; BPG=0x200000; DPG=0x280000; STAMPS=0x800000
T0=0x5A
LOG2E=1.4426950408889634
L_Q=0; L_TAG=1024; L_H=1280; L_ST=3328; L_O=3584; L_B=11776; L_CP=13824; L_W=30208
NREP=8

HEADER = open("adaLN_cond__gqa_block_cached__glu_gated_geglu__decode.s.ref").read().split("; Override launch")[0]

def gen(diag=False, N1=31, N2=24, skip_epi_w=False, POLL_LIMIT=200000, pace_sleep=8, wpol="nt", dry=False, b_sleep=0,
        pre1=0, NL=3, c_sleep=0, f_sleep=0, c_pre=0, f_pre=0, qsleep=0, kvdelay=0, h_sleep=0, q_sleep=0, wo_b=8, gu_b=4, dn_b=8, PD=4):
    a=Asm()
    STV=7
    LDS_BYTES=L_W+max(98304, 4*8192*NL)
    NPRE=5+NL
    def stamp(idx):
        if not diag: return
        a("s_memrealtime s[96:97]")
        a("s_waitcnt lgkmcnt(0)")
        a(f"v_writelane_b32 v{STV}, s96, {idx}")
    def rnd_bf16_pair(dst0,dst1,s0,s1,tmp):
        a(f"v_cvt_pk_bf16_f32 {tmp}, {s0}, {s1}")
        a(f"v_lshlrev_b32 {dst0}, 16, {tmp}")
        a(f"v_and_b32 {dst1}, 0xffff0000, {tmp}")
    def rnd1(dst,src):
        a(f"v_cvt_pk_bf16_f32 {dst}, {src}, {src}")
        a(f"v_and_b32 {dst}, 0xffff0000, {dst}")
    DPPF="row_mask:0xf bank_mask:0xf"
    def red16to2(V, full=True):
        for t in range(4):
            for e in range(2): a(f"v_permlane32_swap_b32 v{V[2*t+e]}, v{V[2*(t+4)+e]}")
        for t in range(4):
            for e in range(2): a(f"v_add_f32 v{V[2*t+e]}, v{V[2*t+e]}, v{V[2*(t+4)+e]}")
        for t in range(2):
            for e in range(2): a(f"v_permlane16_swap_b32 v{V[2*t+e]}, v{V[2*(t+2)+e]}")
        for t in range(2):
            for e in range(2): a(f"v_add_f32 v{V[2*t+e]}, v{V[2*t+e]}, v{V[2*(t+2)+e]}")
        for e in range(2): a(f"v_add_f32_dpp v{V[e]}, v{V[e]}, v{V[e]} row_ror:8 row_mask:0xf bank_mask:0x3")
        for e in range(2): a(f"v_add_f32_dpp v{V[e]}, v{V[2+e]}, v{V[2+e]} row_ror:8 row_mask:0xf bank_mask:0xc")
        if full:
            for m in ("quad_perm:[1,0,3,2]","quad_perm:[2,3,0,1]","row_half_mirror"):
                for e in range(2): a(f"v_add_f32_dpp v{V[e]}, v{V[e]}, v{V[e]} {m} {DPPF}")
    def do_checks(checks):
        first1=True; first0=True
        for (w0,w1) in checks:
            if first1: a(f"v_xor_b32 v2, s20, v{w1}"); first1=False
            else: a(f"v_bitop3_b32 v2, v2, v{w1}, s20 bitop3:0xf6")
            if w0 is not None:
                if first0: a(f"v_xor_b32 v3, s19, v{w0}"); first0=False
                else: a(f"v_bitop3_b32 v3, v3, v{w0}, s19 bitop3:0xf6")
        if not first0:
            a("v_and_b32 v3, 0xff, v3"); a("v_or_b32 v2, v2, v3")
        a("v_cmp_ne_u32 vcc, 0, v2")
    def poll(loads, checks, name, slp=0, lim="s80", fail=None):
        L=a.lab("POLL"+name); D=a.lab("PD"+name)
        a(f"s_mov_b32 s21, {lim}")
        a(f"{L}:")
        for l in loads: a(l)
        a("s_waitcnt vmcnt(0)")
        do_checks(checks)
        a(f"s_cbranch_vccz {D}")
        if fail: fail()
        if slp: a(f"s_sleep {slp}")
        a("s_sub_u32 s21, s21, 1")
        a(f"s_cbranch_scc0 {L}")
        a(f"{D}:")
    def barrier_nd():
        L=a.lab("NB")
        a("s_cmp_eq_u32 s77, 1"); a(f"s_cbranch_scc1 {L}"); a("s_barrier"); a(f"{L}:")
    def mstore(ins, mask=None):
        if mask is None: a("s_mov_b64 exec, s[78:79]")
        else: a(f"s_and_b64 exec, {mask}, s[78:79]")
        for i in ins: a(i)
        a("s_mov_b64 exec, -1")
    def ln_stats(X, tmp):
        d=tmp+2
        a(f"v_readfirstlane_b32 s30, v{X[0]}")
        for i in range(8): a(f"v_subrev_f32 v{d+i}, s30, v{X[i]}")
        s1=tmp; s2=tmp+1
        a(f"v_add_f32 v{s1}, v{d}, v{d+1}")
        a(f"v_mul_f32 v{s2}, v{d}, v{d}")
        for i in range(1,8):
            if i>=2: a(f"v_add_f32 v{s1}, v{s1}, v{d+i}")
            a(f"v_fmac_f32 v{s2}, v{d+i}, v{d+i}")
        for m in ("quad_perm:[1,0,3,2]","quad_perm:[2,3,0,1]","row_half_mirror","row_mirror"):
            a(f"v_add_f32_dpp v{s1}, v{s1}, v{s1} {m} {DPPF}")
            a(f"v_add_f32_dpp v{s2}, v{s2}, v{s2} {m} {DPPF}")
        a(f"v_permlane16_swap_b32 v{s1}, v{s2}")
        a(f"v_add_f32 v{s1}, v{s1}, v{s2}")
        a(f"v_mov_b32 v{s2}, v{s1}")
        a(f"v_permlane32_swap_b32 v{s1}, v{s2}")
        a(f"v_add_f32 v{s1}, v{s1}, v{s2}")
        a(f"s_mov_b32 s33, {f32(1.0/512)}")
        a(f"v_mul_f32 v{s1}, s33, v{s1}")
        a(f"v_readlane_b32 s31, v{s1}, 0")
        a(f"v_readlane_b32 s32, v{s1}, 16")
        a(f"v_mov_b32 v{d}, s31"); a(f"v_mov_b32 v{d+1}, s32")
        a(f"v_add_f32 v{s1}, s30, v{d}")
        a(f"v_fma_f32 v{s2}, -v{d}, v{d}, v{d+1}")
        a(f"v_max_f32 v{s2}, 0, v{s2}")
        rnd_bf16_pair(f"v{s1}",f"v{s2}",f"v{s1}",f"v{s2}",f"v{d}")
        a(f"v_add_f32 v{s2}, {f32(1e-5)}, v{s2}")
        rnd1(f"v{s2}",f"v{s2}")
        a(f"v_sqrt_f32 v{s2}, v{s2}")
        rnd1(f"v{tmp+10}",f"v{s2}")
        a(f"v_rcp_f32 v{s2}, v{tmp+10}")
    def ln_norm(X, tmp, refine=False):
        t=tmp+2
        for i in range(8): a(f"v_sub_f32 v{X[i]}, v{X[i]}, v{tmp}")
        for i in range(0,8,2): rnd_bf16_pair(f"v{X[i]}",f"v{X[i+1]}",f"v{X[i]}",f"v{X[i+1]}",f"v{t+i//2}")
        if refine:
            for i in range(8): a(f"v_mul_f32 v{t+i}, v{X[i]}, v{tmp+1}")
            for i in range(8): a(f"v_fma_f32 v{X[i]}, -v{t+i}, v{tmp+10}, v{X[i]}")
            for i in range(8): a(f"v_fma_f32 v{X[i]}, v{X[i]}, v{tmp+1}, v{t+i}")
        else:
            for i in range(8): a(f"v_mul_f32 v{X[i]}, v{X[i]}, v{tmp+1}")
        for i in range(0,8,2): rnd_bf16_pair(f"v{X[i]}",f"v{X[i+1]}",f"v{X[i]}",f"v{X[i+1]}",f"v{t+i//2}")
    def modulate(X, OP, SH, OUT, tmp):
        for i in range(8): a(f"v_mul_f32 v{X[i]}, v{X[i]}, v{OP[i]}")
        for i in range(0,8,2): rnd_bf16_pair(f"v{X[i]}",f"v{X[i+1]}",f"v{X[i]}",f"v{X[i+1]}",f"v{tmp+i//2}")
        for i in range(8): a(f"v_add_f32 v{X[i]}, v{X[i]}, v{SH[i]}")
        for i in range(0,8,2): a(f"v_cvt_pk_bf16_f32 v{OUT[i//2]}, v{X[i]}, v{X[i+1]}")
    def unpack(dst0,dst1,src):
        a(f"v_lshlrev_b32 v{dst0}, 16, v{src}"); a(f"v_and_b32 v{dst1}, 0xffff0000, v{src}")
    def permpair(lo,hi,A,B):
        a(f"v_perm_b32 v{lo}, v{B}, v{A}, s22"); a(f"v_perm_b32 v{hi}, v{B}, v{A}, s23")
    def perm8x8(dst, raw):
        for i in range(4):
            for d in range(4): permpair(dst+8*i+2*d, dst+8*i+2*d+1, raw+8*i+d, raw+8*i+4+d)
    def shift_scale_gather(vec0, bsreg, SHv, OPv, name, R0=40):
        a(f"s_lshl_b32 s14, {bsreg}, 11"); a(f"s_add_u32 s14, s14, {MODG+vec0*4096}")
        a("v_lshlrev_b32 v6, 5, v0"); a("v_add_u32 v6, s14, v6"); a(f"v_add_u32 v{R0+16}, 0x1000, v6")
        poll([f"global_load_dwordx4 v[{R0}:{R0+3}], v6, s[8:9] sc1",f"global_load_dwordx4 v[{R0+4}:{R0+7}], v6, s[8:9] offset:16 sc1",
              f"global_load_dwordx4 v[{R0+8}:{R0+11}], v{R0+16}, s[8:9] sc1",f"global_load_dwordx4 v[{R0+12}:{R0+15}], v{R0+16}, s[8:9] offset:16 sc1"],
             [(None,R0+1+2*i) for i in range(8)], name, lim=POLL_LIMIT, slp=h_sleep)
        for i in range(4): unpack(SHv+2*i,SHv+1+2*i,R0+2*i)
        for i in range(4): unpack(OPv+2*i,OPv+1+2*i,R0+8+2*i)
        for i in range(8): a(f"v_add_f32 v{OPv+i}, 1.0, v{OPv+i}")
        for i in range(0,8,2): rnd_bf16_pair(f"v{OPv+i}",f"v{OPv+1+i}",f"v{OPv+i}",f"v{OPv+1+i}",f"v{R0+i//2}")

    a(f"{KN}:")
    a("s_cmp_ge_u32 s2, 256")
    a("s_cbranch_scc1 L_END")
    if diag: a("s_memrealtime s[94:95]")
    a("s_load_dwordx4 s[4:7], s[0:1], 8")
    a("s_load_dwordx2 s[8:9], s[0:1], 104")
    a("s_load_dwordx2 s[58:59], s[0:1], 88")
    a("v_lshrrev_b32 v1, 6, v0")
    a("v_and_b32 v0, 63, v0")
    a("v_readfirstlane_b32 s3, v1")
    a("s_mov_b32 s76, s2")
    a("s_and_b32 s11, s2, 7"); a("s_lshr_b32 s12, s2, 3")
    a("s_lshl_b32 s10, s11, 1"); a("s_add_u32 s10, s10, s12"); a("s_and_b32 s10, s10, 15")
    a("s_lshr_b32 s12, s2, 7"); a("s_lshl_b32 s12, s12, 3"); a("s_add_u32 s11, s11, s12")
    a("s_lshr_b32 s12, s10, 3")
    a("s_lshl_b32 s2, s10, 4"); a("s_add_u32 s2, s2, s11")
    a("s_mov_b32 s22, 0x05040100"); a("s_mov_b32 s23, 0x07060302")
    a(f"s_mov_b32 s19, {T0}")
    a("s_mov_b32 s77, 0"); a("s_mov_b64 s[78:79], -1"); a(f"s_mov_b32 s80, {POLL_LIMIT}")
    if diag: a(f"v_mov_b32 v{STV}, 0")
    a("s_cmp_lt_u32 s76, 64"); a("s_cbranch_scc1 L_SERV")
    a("s_cmp_ge_u32 s3, 4")
    a("s_cbranch_scc1 L_HELP")
    if kvdelay: a(f"s_sleep {kvdelay}")
    a("L_STREAM:")
    Q=8; O=24; S=56; TM=60; P=70; M=72; MB=73; LS=74; AL=75; T=76
    WK=96; WV=112; LK=128; LV=144; SL=[160,192,224]
    a("v_and_b32 v2, 3, v0"); a("v_lshlrev_b32 v2, 10, v2")
    a("v_bfe_u32 v3, v0, 2, 2"); a("v_lshl_add_u32 v1, v3, 8, v2")
    a("v_lshrrev_b32 v3, 4, v0"); a("v_lshl_add_u32 v1, v3, 4, v1")
    a("v_lshlrev_b32 v2, 4, v0")
    a("s_lshl_b32 s13, s11, 2"); a("s_add_u32 s13, s13, s3")
    a("s_lshl_b32 s14, s10, 23")
    a("s_lshl_b32 s15, s13, 12")
    a("s_waitcnt lgkmcnt(0)")
    a("s_add_u32 s4, s4, s14"); a("s_addc_u32 s5, s5, 0")
    a("s_add_u32 s6, s6, s14"); a("s_addc_u32 s7, s7, 0")
    def ldK(r):
        a("s_add_u32 s24, s4, s15"); a("s_addc_u32 s25, s5, 0")
        for s in range(4): a(f"global_load_dwordx4 v[{r+4*s}:{r+4*s+3}], v1, s[24:25] offset:{64*s} nt")
    def ldV(r):
        a("s_add_u32 s26, s6, s15"); a("s_addc_u32 s27, s7, 0")
        for j in range(4): a(f"global_load_dwordx4 v[{r+4*j}:{r+4*j+3}], v2, s[26:27] offset:{1024*j} nt")
    ldK(WK)
    if pre1==0: ldV(WV)
    if diag: a(f"v_writelane_b32 v{STV}, s94, 0")
    for i in range(16): a(f"v_mov_b32 v{Q+i}, 0")
    for i in range(32): a(f"v_mov_b32 v{O+i}, 0")
    a(f"v_mov_b32 v{M}, 0xff800000"); a(f"v_mov_b32 v{MB}, 0xff800000"); a(f"v_mov_b32 v{LS}, 0")
    a("s_and_b32 s86, s13, 15")
    a("s_lshl_b32 s16, s10, 4"); a("s_add_u32 s16, s16, s86"); a("s_lshl_b32 s16, s16, 7"); a(f"s_add_u32 s16, s16, {CNT}")
    a("s_add_u32 s28, s8, s16"); a("s_addc_u32 s29, s9, 0")
    a("s_cmp_lt_u32 s76, 64"); a(f"s_cselect_b32 s87, {N2-1}, {N1-1}")
    a("s_sub_u32 s88, s87, 1")
    a("s_and_b32 s16, s11, 3"); a("s_lshl_b32 s16, s16, 1"); a("s_sub_u32 s16, s10, s16"); a("s_bfe_u32 s16, s16, 0x10003")
    a(f"s_add_u32 s89, s16, {4*N2}")
    a(f"s_mov_b32 s34, {f32(128**-0.5)}"); a(f"s_mov_b32 s35, {f32(LOG2E)}")
    pc=1
    if pre1>0:
        a("s_waitcnt vmcnt(0)"); ldV(WV); pc=2
    else: pc=2
    a(f"s_mul_i32 s39, s3, {8192*NL}"); a(f"s_add_u32 s39, s39, {L_W}")
    seq=[("r",SL[0]),("r",SL[1]),("r",SL[2])]+[("l",i) for i in range(NL)]+[("r",LK)]
    for (kind,k) in seq:
        a(f"s_add_u32 s15, s15, {64*4096}")
        a(f"s_waitcnt vmcnt({0 if pc<pre1 else PD})"); pc+=1
        if kind=="r": ldK(k)
        else:
            a("s_add_u32 s24, s4, s15"); a("s_addc_u32 s25, s5, 0")
            for q in range(4):
                a(f"s_add_u32 m0, s39, {8192*k+1024*q-64*q}"); a("s_nop 0")
                a(f"global_load_lds_dwordx4 v1, s[24:25] offset:{64*q} nt")
        a(f"s_waitcnt vmcnt({0 if pc<pre1 else PD})"); pc+=1
        if kind=="r": ldV(k+16)
        else:
            a("s_add_u32 s26, s6, s15"); a("s_addc_u32 s27, s7, 0")
            a(f"s_add_u32 m0, s39, {8192*k+4096}"); a("s_nop 0")
            for q in range(4): a(f"global_load_lds_dwordx4 v2, s[26:27] offset:{1024*q} nt")
    stamp(1)
    if PD>4: a("s_waitcnt vmcnt(8)")
    a("s_barrier")
    a("v_and_b32 v5, 15, v0"); a("v_lshlrev_b32 v6, 8, v5"); a("v_lshrrev_b32 v56, 4, v0"); a("v_lshl_add_u32 v6, v56, 4, v6")
    a(f"v_mov_b32 v57, {L_TAG}"); a("ds_read_b32 v58, v57")
    a("v_cmp_gt_u32 vcc, 4, v5")
    a("s_and_saveexec_b64 s[36:37], vcc")
    for s in range(4): a(f"ds_read_b128 v[{Q+4*s}:{Q+4*s+3}], v6 offset:{L_Q+64*s}")
    a("s_mov_b64 exec, s[36:37]")
    a(f"s_mov_b32 s18, {NPRE-1}")
    a("s_mov_b32 s17, 0")
    sched=[]; nb=3+NL
    while nb>0:
        sched.append(0)
        for _ in range(2):
            if nb>0: sched.append(1); nb-=1
    mask=sum(bit<<(i+1) for i,bit in enumerate(sched)); LASTB=len(sched)
    a(f"s_mov_b32 s84, {mask}"); a("s_mov_b32 s85, 0")
    a("v_add_u32 v92, s39, v2")
    a("s_waitcnt lgkmcnt(0)")
    a("v_readfirstlane_b32 s20, v58")
    stamp(2)
    def qk(r):
        a(f"v_mfma_f32_16x16x32_bf16 v[{S}:{S+3}], v[{r}:{r+3}], v[{Q}:{Q+3}], 0")
        for s in range(1,4): a(f"v_mfma_f32_16x16x32_bf16 v[{S}:{S+3}], v[{r+4*s}:{r+4*s+3}], v[{Q+4*s}:{Q+4*s+3}], v[{S}:{S+3}]")
    def perms(r):
        for d in range(4):
            a(f"v_perm_b32 v{T+4*d}, v{r+4+d}, v{r+d}, s22")
            a(f"v_perm_b32 v{T+4*d+1}, v{r+12+d}, v{r+8+d}, s22")
            a(f"v_perm_b32 v{T+4*d+2}, v{r+4+d}, v{r+d}, s23")
            a(f"v_perm_b32 v{T+4*d+3}, v{r+12+d}, v{r+8+d}, s23")
    a("s_branch L_REGIT")
    a("L_PERMW:")
    perms(WV)
    a("s_branch L_PV")
    a("L_BACK:")
    a("s_add_u32 s85, s85, 1")
    a("s_cmp_eq_u32 s85, 1"); a("s_cbranch_scc1 L_CP0")
    a("s_cmp_eq_u32 s85, 2"); a("s_cbranch_scc1 L_CP1")
    a("s_cmp_eq_u32 s85, 3"); a("s_cbranch_scc1 L_CP2")
    for q in range(8): a(f"ds_read_b128 v[{WK+4*q}:{WK+4*q+3}], v92 offset:{1024*q}")
    a("v_add_u32 v92, 0x2000, v92")
    a(f"s_cmp_lg_u32 s85, {3+NL}")
    a("s_waitcnt lgkmcnt(0)")
    a("s_cbranch_scc1 L_REGIT")
    a("s_barrier")
    a("s_branch L_REGIT")
    for i in range(3):
        a(f"L_CP{i}:")
        for j in range(16): a(f"v_mov_b64 v[{WK+2*j}:{WK+2*j+1}], v[{SL[i]+2*j}:{SL[i]+2*j+1}]")
        if i<2: a("s_branch L_REGIT")
    a("L_REGIT:")
    a("s_mov_b32 s38, 1")
    qk(WK)
    a("s_nop 6")
    a("s_branch L_SOFT")
    a("L_LOOP:")
    a("s_lshr_b32 s84, s84, 1")
    a("s_bitcmp1_b32 s84, 0"); a("s_cbranch_scc1 L_BACK")
    a("L_LIT:")
    a("s_waitcnt vmcnt(4)")
    qk(LK)
    a("s_mov_b32 s38, 0")
    a(f"s_add_u32 s15, s15, {64*4096}")
    a("s_cmp_lt_u32 s18, s87"); a("s_cbranch_scc1 L_HAVE")
    a("s_waitcnt lgkmcnt(0)")
    a("s_lshl_b32 s15, s90, 2"); a("s_add_u32 s15, s15, s89")
    a(f"s_add_u32 s16, s90, {4*N1-(N1-N2)}")
    a(f"s_cmp_lt_u32 s90, {N1-N2}"); a("s_cselect_b32 s15, s15, s16")
    a("s_mov_b32 s38, 2")
    a("s_cmp_ge_u32 s15, 128"); a("s_cbranch_scc1 L_SOFT")
    a("s_lshl_b32 s15, s15, 4"); a("s_add_u32 s15, s15, s86"); a("s_lshl_b32 s15, s15, 12")
    a("s_mov_b32 s38, 0")
    a("L_HAVE:")
    ldK(LK)
    a("s_cmp_lt_u32 s18, s88"); a("s_cbranch_scc1 L_NOCL")
    a("s_mov_b32 s90, 1")
    a("s_atomic_add s90, s[28:29], 0 glc")
    a("L_NOCL:")
    a("s_add_u32 s18, s18, 1")
    a("L_SOFT:")
    x=[TM,TM+1,TM+2,TM+3]
    rnd_bf16_pair(f"v{x[0]}",f"v{x[1]}",f"v{S}",f"v{S+1}",f"v{TM+4}")
    rnd_bf16_pair(f"v{x[2]}",f"v{x[3]}",f"v{S+2}",f"v{S+3}",f"v{TM+5}")
    for i in range(4): a(f"v_mul_f32 v{x[i]}, s34, v{x[i]}")
    rnd_bf16_pair(f"v{x[0]}",f"v{x[1]}",f"v{x[0]}",f"v{x[1]}",f"v{TM+4}")
    rnd_bf16_pair(f"v{x[2]}",f"v{x[3]}",f"v{x[2]}",f"v{x[3]}",f"v{TM+5}")
    a(f"v_max3_f32 v{TM+4}, v{x[0]}, v{x[1]}, v{x[2]}")
    a(f"v_max3_f32 v{TM+4}, v{TM+4}, v{x[3]}, v{M}")
    a(f"v_mov_b32 v{TM+5}, v{TM+4}")
    a(f"v_permlane32_swap_b32 v{TM+4}, v{TM+5}")
    a(f"v_max_f32 v{TM+4}, v{TM+4}, v{TM+5}")
    a(f"v_mov_b32 v{TM+5}, v{TM+4}")
    a(f"v_permlane16_swap_b32 v{TM+4}, v{TM+5}")
    a(f"v_max_f32 v{M}, v{TM+4}, v{TM+5}")
    a(f"v_mul_f32 v{TM+4}, s35, v{M}")
    a(f"v_sub_f32 v{AL}, v{MB}, v{TM+4}")
    a(f"v_mov_b32 v{MB}, v{TM+4}")
    a(f"v_exp_f32 v{AL}, v{AL}")
    for i in range(4): a(f"v_fma_f32 v{x[i]}, v{x[i]}, s35, -v{MB}")
    for i in range(4): a(f"v_exp_f32 v{x[i]}, v{x[i]}")
    for i in range(0,32,2): a(f"v_pk_mul_f32 v[{O+i}:{O+i+1}], v[{O+i}:{O+i+1}], v[{AL-1}:{AL}] op_sel:[0,1] op_sel_hi:[1,1]")
    a(f"v_mul_f32 v{LS}, v{LS}, v{AL}")
    a(f"v_add_f32 v{TM+4}, v{x[0]}, v{x[1]}"); a(f"v_add_f32 v{TM+5}, v{x[2]}, v{x[3]}")
    a(f"v_cvt_pk_bf16_f32 v{P}, v{x[0]}, v{x[1]}"); a(f"v_cvt_pk_bf16_f32 v{P+1}, v{x[2]}, v{x[3]}")
    a(f"v_add_f32 v{TM+4}, v{TM+4}, v{TM+5}"); a(f"v_add_f32 v{LS}, v{LS}, v{TM+4}")
    a("s_cmp_eq_u32 s38, 1"); a("s_cbranch_scc1 L_PERMW")
    a("s_cmp_eq_u32 s38, 0"); a("s_cbranch_scc1 L_W4")
    a("s_waitcnt vmcnt(0)")
    a("L_W4:"); a("s_waitcnt vmcnt(4)")
    perms(LV)
    a("s_cmp_eq_u32 s38, 2"); a("s_cbranch_scc1 L_PV")
    ldV(LV)
    a("L_PV:")
    for t in range(8): a(f"v_mfma_f32_16x16x16_bf16 v[{O+4*t}:{O+4*t+3}], v[{T+2*t}:{T+2*t+1}], v[{P}:{P+1}], v[{O+4*t}:{O+4*t+3}]")
    if diag:
        a("s_memrealtime s[96:97]"); a("s_add_u32 m0, s17, 20"); a("s_min_u32 m0, m0, 60"); a("s_waitcnt lgkmcnt(0)"); a(f"v_writelane_b32 v{STV}, s96, m0")
    a("s_add_u32 s17, s17, 1")
    a("s_cmp_lg_u32 s38, 2"); a("s_cbranch_scc1 L_LOOP")
    stamp(3)
    if diag: a(f"v_writelane_b32 v{STV}, s17, 62")
    a("L_SDONE:")
    a(f"v_mov_b32 v{TM}, v{LS}"); a(f"v_permlane32_swap_b32 v{LS}, v{TM}"); a(f"v_add_f32 v{LS}, v{LS}, v{TM}")
    a(f"v_mov_b32 v{TM}, v{LS}"); a(f"v_permlane16_swap_b32 v{LS}, v{TM}"); a(f"v_add_f32 v{M+1}, v{LS}, v{TM}")
    a("v_and_b32 v5, 15, v0"); a("v_lshrrev_b32 v6, 4, v0")
    a("s_lshl_b32 s14, s3, 11")
    a("v_lshlrev_b32 v56, 9, v5"); a("v_lshl_add_u32 v56, v6, 4, v56"); a("v_add_u32 v56, s14, v56")
    a("s_lshl_b32 s14, s3, 3")
    a("v_lshlrev_b32 v57, 5, v5"); a("v_add_u32 v57, s14, v57")
    a("v_cmp_gt_u32 vcc, 4, v5")
    a("v_lshlrev_b32 v5, 4, v0")
    mstore([f"ds_write_b128 v56, v[{O+4*t}:{O+4*t+3}] offset:{L_O+64*t}" for t in range(8)]+[f"ds_write_b64 v57, v[{M}:{M+1}] offset:{L_ST}"], "vcc")
    WO=224; SB=208; OP=216; GA=208; GB=209; XV=210; IDX=211; X1V=212
    GU=96; DN=160
    a("L_COMB:")
    a("s_lshr_b32 s14, s3, 1"); a("s_and_b32 s15, s3, 1")
    a("s_lshl_b32 s16, s14, 9"); a("s_lshl_b32 s17, s15, 8"); a("s_add_u32 s16, s16, s17")
    a("v_lshlrev_b32 v8, 2, v0"); a("v_add_u32 v8, s16, v8")
    a("s_lshl_b32 s16, s14, 5"); a("v_mov_b32 v9, s16")
    a(f"s_mov_b32 s35, {f32(LOG2E)}")
    a("s_lshl_b32 s16, s10, 4"); a("s_lshl_b32 s17, s14, 2"); a("s_add_u32 s16, s16, s17"); a("s_lshl_b32 s17, s15, 1"); a("s_add_u32 s16, s16, s17")
    a("s_lshl_b32 s16, s16, 4"); a("s_add_u32 s16, s16, s11"); a("s_lshl_b32 s16, s16, 8"); a(f"s_add_u32 s16, s16, {PARTG}")
    a("v_lshrrev_b32 v10, 5, v0"); a("v_lshlrev_b32 v10, 12, v10"); a("v_and_b32 v11, 31, v0"); a("v_lshl_add_u32 v10, v11, 3, v10"); a("v_add_u32 v10, s16, v10")
    a("s_lshl_b32 s16, s10, 2"); a("s_add_u32 s16, s16, s14"); a("s_lshl_b32 s16, s16, 4"); a("s_add_u32 s16, s16, s11"); a("s_lshl_b32 s16, s16, 7"); a(f"s_add_u32 s16, s16, {STG}")
    a("v_mov_b32 v11, s16")
    a("v_mov_b32 v81, s20"); a("v_mov_b32 v85, s20"); a("v_mov_b32 v87, s20")
    a("s_mov_b32 s17, 0xffffff00")
    a("s_xor_b32 s15, s15, 1"); a("s_mov_b32 s82, s15"); a("s_mov_b32 s83, 0")
    a("s_waitcnt lgkmcnt(0)")
    barrier_nd()
    stamp(6)
    a(f"ds_read_b128 v[60:63], v9 offset:{L_ST}"); a(f"ds_read_b128 v[64:67], v9 offset:{L_ST+16}")
    for w in range(4): a(f"ds_read_b32 v{68+w}, v8 offset:{L_O+2048*w}")
    a("s_waitcnt lgkmcnt(4)")
    a("v_max3_f32 v84, v60, v62, v64"); a("v_max_f32 v84, v84, v66")
    a("v_mul_f32 v12, s35, v84")
    for w in range(4): a(f"v_mul_f32 v{60+2*w}, s35, v{60+2*w}")
    for w in range(4): a(f"v_sub_f32 v{60+2*w}, v{60+2*w}, v12")
    for w in range(4): a(f"v_exp_f32 v{60+2*w}, v{60+2*w}")
    a("s_waitcnt lgkmcnt(0)")
    a("v_mul_f32 v80, v60, v68"); a("v_mul_f32 v86, v60, v61")
    for w in range(1,4):
        a(f"v_fmac_f32 v80, v{60+2*w}, v{68+w}"); a(f"v_fmac_f32 v86, v{60+2*w}, v{61+2*w}")
    a("v_and_b32 v80, s17, v80"); a("v_or_b32 v80, s19, v80")
    mstore(["global_store_dwordx2 v10, v[80:81], s[8:9] sc1"])
    a("v_and_b32 v86, s17, v86"); a("v_or_b32 v86, s19, v86"); a("v_or_b32 v84, s19, v84")
    mstore(["global_store_dwordx4 v11, v[84:87], s[8:9] sc1"], "s[82:83]")
    stamp(7)
    a("s_sub_u32 s13, s76, 64")
    a("s_cmp_lt_u32 s13, 56"); a("s_cselect_b32 s38, 1, 0")
    a("s_cmp_ge_u32 s3, 4"); a("s_cbranch_scc1 L_B")
    a("s_cmp_eq_u32 s38, 0"); a("s_cbranch_scc1 L_FIN")
    a("s_barrier")
    a("s_branch L_C")
    a("L_B:")
    a("s_and_b32 s14, s2, 0xfc"); a("s_add_u32 s14, s14, s3"); a("s_sub_u32 s14, s14, 4"); a("s_lshl_b32 s14, s14, 12"); a(f"s_add_u32 s14, s14, {PARTG}")
    a("v_lshrrev_b32 v8, 5, v0"); a("v_lshlrev_b32 v9, 11, v8"); a("v_and_b32 v10, 31, v0"); a("v_lshl_add_u32 v9, v10, 3, v9"); a("v_add_u32 v9, s14, v9")
    a("s_lshr_b32 s14, s2, 2"); a("s_lshl_b32 s14, s14, 11"); a(f"s_add_u32 s14, s14, {STG}")
    a("v_and_b32 v10, 15, v0"); a("v_lshlrev_b32 v11, 3, v8"); a("v_xor_b32 v10, v10, v11"); a("v_lshlrev_b32 v10, 7, v10"); a("v_add_u32 v10, s14, v10")
    a("s_lshl_b32 s14, s12, 5"); a("s_and_b32 s15, s11, 3"); a("s_lshl_b32 s15, s15, 3"); a("s_add_u32 s14, s14, s15"); a("s_lshl_b32 s14, s14, 5")
    a("s_bfe_u32 s15, s2, 0x50002"); a("s_add_u32 s14, s14, s15"); a("s_lshl_b32 s14, s14, 7"); a(f"s_add_u32 s14, s14, {BPG}")
    a("v_lshrrev_b32 v11, 3, v0"); a("v_lshlrev_b32 v11, 12, v11"); a("v_and_b32 v12, 7, v0"); a("v_lshl_add_u32 v11, v12, 4, v11"); a("v_add_u32 v11, s14, v11")
    a("s_sub_u32 s14, s3, 4"); a("s_lshl_b32 s14, s14, 9"); a("v_lshlrev_b32 v13, 3, v0"); a("v_add_u32 v12, s14, v13")
    poll(["global_load_dwordx4 v[32:35], v10, s[8:9] sc1"]+[f"global_load_dwordx2 v[{16+2*i}:{17+2*i}], v9, s[8:9] offset:{256*i} sc1" for i in range(8)],
         [(32,33),(34,35)]+[(16+2*i,17+2*i) for i in range(8)], "B", slp=b_sleep)
    stamp(8)
    a("v_and_b32 v32, 0xffff0000, v32")
    a("v_mov_b32 v36, v32")
    for m in ("quad_perm:[1,0,3,2]","quad_perm:[2,3,0,1]","row_half_mirror","row_mirror"):
        a(f"v_max_f32_dpp v36, v36, v36 {m} {DPPF}")
    a("v_mul_f32 v32, s35, v32"); a("v_mul_f32 v36, s35, v36"); a("v_sub_f32 v32, v32, v36"); a("v_exp_f32 v32, v32")
    a("v_mul_f32 v34, v34, v32")
    a("v_mul_f32_dpp v36, v32, v16 row_newbcast:0 "+DPPF)
    ms=["quad_perm:[1,0,3,2]","quad_perm:[2,3,0,1]","row_half_mirror","row_mirror"]
    for i in range(1,8):
        a(f"v_fmac_f32_dpp v36, v32, v{16+2*i} row_newbcast:{i} {DPPF}")
        if i%2==1: a(f"v_add_f32_dpp v34, v34, v34 {ms[i//2]} {DPPF}")
    a("v_mov_b32 v37, v36"); a("v_rcp_f32 v34, v34"); a("v_permlane32_swap_b32 v36, v37"); a("v_add_f32 v36, v36, v37")
    a("v_mul_f32 v36, v36, v34")
    a(f"v_mov_b32_dpp v37, v36 quad_perm:[1,0,3,2] {DPPF}")
    a("v_cvt_pk_bf16_f32 v36, v36, v37")
    for i in range(16): a(f"v_readlane_b32 s{60+i}, v36, {2*i}")
    for i in range(16):
        a(f"v_dot2_f32_bf16 v40, v{WO+i}, s{60+i}, {'0' if i==0 else 'v40'}")
        a(f"v_dot2_f32_bf16 v41, v{WO+16+i}, s{60+i}, {'0' if i==0 else 'v41'}")
    a(f"ds_write_b64 v12, v[40:41] offset:{L_B}")
    a("s_waitcnt lgkmcnt(0)")
    barrier_nd()
    a("s_cmp_lg_u32 s3, 4"); a("s_cbranch_scc1 L_BX")
    for w in range(4): a(f"ds_read_b64 v[{16+2*w}:{17+2*w}], v13 offset:{L_B+512*w}")
    a("v_mov_b32 v41, s20"); a("v_mov_b32 v43, s20")
    a("s_waitcnt lgkmcnt(0)")
    a("v_pk_add_f32 v[16:17], v[16:17], v[18:19]"); a("v_pk_add_f32 v[20:21], v[20:21], v[22:23]"); a("v_pk_add_f32 v[16:17], v[16:17], v[20:21]")
    a("v_and_b32 v40, s17, v16"); a("v_and_b32 v42, s17, v17"); a("v_or_b32 v40, s19, v40"); a("v_or_b32 v42, s19, v42")
    mstore(["global_store_dwordx4 v11, v[40:43], s[8:9] sc1"])
    stamp(9)
    a("L_BX:")
    a("s_cmp_eq_u32 s38, 1"); a("s_cbranch_scc1 L_C")
    a("s_cmp_lg_u32 s3, 5"); a("s_cbranch_scc1 L_FIN")
    a("s_sub_u32 s13, s76, 128")
    a("s_cmp_ge_u32 s13, 64"); a("s_cbranch_scc1 L_FIN")
    def colreduce(v0_,v1_,tmp):
        a(f"v_permlane32_swap_b32 v{v0_}, v{v1_}"); a(f"v_add_f32 v{v0_}, v{v0_}, v{v1_}")
        a(f"v_mov_b32 v{tmp}, v{v0_}"); a(f"v_permlane16_swap_b32 v{v0_}, v{tmp}"); a(f"v_add_f32 v{v0_}, v{v0_}, v{tmp}")
        a(f"v_add_f32_dpp v{v0_}, v{v0_}, v{v0_} row_ror:8 {DPPF}")
    def treesum(base, n):
        idx=list(range(n))
        while len(idx)>1:
            nxt=[]
            for i in range(0,len(idx)-1,2):
                for o in (0,2): a(f"v_add_f32 v{base+4*idx[i]+o}, v{base+4*idx[i]+o}, v{base+4*idx[i+1]+o}")
                nxt.append(idx[i])
            if len(idx)%2: nxt.append(idx[-1])
            idx=nxt
    a("s_lshl_b32 s14, s13, 12"); a(f"s_add_u32 s14, s14, {BPG}"); a("v_add_u32 v9, s14, v5")
    a(f"v_bfe_u32 v12, v0, 3, 2"); a("v_lshlrev_b32 v10, 13, v12"); a(f"v_lshl_add_u32 v10, v{IDX}, 3, v10"); a(f"v_add_u32 v10, {X1G}, v10")
    a(f"v_add_u32 v13, {4*8192}, v10")
    a("v_cmp_eq_u32 s[42:43], 0, v12")
    a("v_mov_b32 v15, s20"); a("v_mov_b32 v4, 0")
    poll([f"global_load_dwordx4 v[{16+4*i}:{19+4*i}], v9, s[8:9] offset:{1024*i} sc1" for i in range(4)],
         [(16+2*i,17+2*i) for i in range(8)], "R")
    stamp(10)
    treesum(16,4)
    colreduce(16,18,17)
    rnd1("v16","v16"); a(f"v_mul_f32 v16, v16, v{GA}"); rnd1("v16","v16"); a(f"v_add_f32 v16, v16, v{XV}"); rnd1(f"v{X1V}","v16")
    a(f"v_or_b32 v14, s19, v{X1V}")
    mstore(["global_store_dwordx2 v10, v[14:15], s[8:9] sc1","global_store_dwordx2 v13, v[14:15], s[8:9] sc1"])
    stamp(11)
    a("s_mul_i32 s14, s13, 7168"); a(f"s_add_u32 s14, s14, {DPG}"); a("v_add_u32 v9, s14, v5"); a("v_add_u32 v10, 0x1000, v9")
    a(f"v_lshlrev_b32 v8, 1, v{IDX}")
    if f_pre: a(f"s_sleep {f_pre}")
    poll([f"global_load_dwordx4 v[{16+4*i}:{19+4*i}], v{9+i//4}, s[8:9] offset:{1024*(i%4)} sc1" for i in range(7)],
         [(16+2*i,17+2*i) for i in range(14)], "F", slp=f_sleep)
    stamp(12)
    treesum(16,7)
    colreduce(16,18,17)
    rnd1("v16","v16"); a(f"v_mul_f32 v16, v16, v{GB}"); rnd1("v16","v16"); a(f"v_add_f32 v16, v16, v{X1V}")
    a("v_cvt_pk_bf16_f32 v16, v16, v16")
    mstore(["global_store_short v8, v16, s[58:59]"], "s[42:43]")
    a("s_cmp_lg_u32 s13, 0"); a("s_cbranch_scc1 L_NOEP")
    mstore(["global_store_dword v4, v15, s[8:9] sc0 sc1"], "1")
    a("L_NOEP:")
    stamp(13)
    a("s_branch L_FIN")
    a("L_C:")
    a("s_and_b32 s14, s3, 3"); a("s_lshl_b32 s14, s14, 13"); a(f"s_add_u32 s14, s14, {L_W}")
    a("v_add_u32 v8, s14, v5"); a("v_add_u32 v9, 0x10000, v8")
    for mtx in range(2):
        for q in range(8): a(f"ds_read_b128 v[{GU+32*mtx+4*q}:{GU+32*mtx+4*q+3}], v8 offset:{32768*mtx+1024*q}")
    for q in range(8): a(f"ds_read_b128 v[{DN+4*q}:{DN+4*q+3}], v9 offset:{1024*q}")
    a("s_lshr_b32 s14, s3, 2"); a("s_lshl_b32 s14, s14, 10"); a("v_add_u32 v15, s14, v5")
    a("s_lshl_b32 s14, s3, 11"); a("v_lshlrev_b32 v11, 5, v0"); a("v_add_u32 v11, s14, v11")
    a("s_lshr_b32 s14, s3, 2"); a("s_lshl_b32 s14, s14, 13"); a("s_and_b32 s15, s3, 3"); a("s_lshl_b32 s15, s15, 9"); a("s_add_u32 s14, s14, s15")
    a("v_lshlrev_b32 v12, 3, v0"); a("v_add_u32 v12, s14, v12")
    a("s_mul_i32 s14, s3, 57344"); a("s_lshl_b32 s15, s13, 7"); a("s_add_u32 s14, s14, s15"); a(f"s_add_u32 s14, s14, {DPG}")
    a("v_lshrrev_b32 v13, 3, v0"); a("v_mul_u32_u24 v13, 7168, v13"); a("v_and_b32 v14, 7, v0"); a("v_lshl_add_u32 v13, v14, 4, v13"); a("v_add_u32 v13, s14, v13")
    a(f"s_mov_b32 s26, {f32(0.044715)}"); a(f"s_mov_b32 s27, {f32(-2.0*0.7978845608028654*LOG2E)}")
    a("v_mov_b32 v81, s20"); a("v_mov_b32 v83, s20")
    a("s_cmp_lt_u32 s3, 6"); a("s_cbranch_scc1 L_CH")
    a("s_sub_u32 s14, s3, 6"); a("s_lshl_b32 s15, s14, 12"); a(f"s_and_b32 s16, s13, {NREP-1}"); a("s_lshl_b32 s16, s16, 13"); a("s_add_u32 s15, s15, s16"); a(f"s_add_u32 s15, s15, {X1G}")
    a("v_lshlrev_b32 v9, 6, v0"); a("v_add_u32 v9, s15, v9")
    a("s_lshl_b32 s14, s14, 10"); a("v_add_u32 v10, s14, v5")
    if c_pre: a(f"s_sleep {c_pre}")
    poll([f"global_load_dwordx4 v[{16+4*i}:{19+4*i}], v9, s[8:9] offset:{16*i} sc1" for i in range(4)],
         [(16+2*i,17+2*i) for i in range(8)], "C", slp=c_sleep)
    stamp(10)
    X=list(range(32,40))
    for i in range(8): a(f"v_and_b32 v{32+i}, 0xffff0000, v{16+2*i}")
    ln_stats(X,40); ln_norm(X,40)
    modulate(X,list(range(OP,OP+8)),list(range(SB,SB+8)),[52,53,54,55],42)
    a(f"ds_write_b128 v10, v[52:55] offset:{L_H}")
    a("L_CH:")
    a("s_waitcnt lgkmcnt(0)")
    barrier_nd()
    stamp(14)
    a(f"ds_read_b128 v[52:55], v15 offset:{L_H}")
    a("s_waitcnt lgkmcnt(0)")
    for i in range(4):
        for t in range(8):
            for mtx in range(2):
                C="0" if i==0 else f"v{56+2*t+mtx}"
                a(f"v_dot2_f32_bf16 v{56+2*t+mtx}, v{GU+32*mtx+8*i+t}, v{52+i}, {C}")
    red16to2(list(range(56,72)))
    rnd_bf16_pair("v56","v57","v56","v57","v58")
    a("v_mul_f32 v58, v56, v56"); a("v_fma_f32 v58, v58, s26, 1.0"); a("v_mul_f32 v58, v58, v56"); a("v_mul_f32 v58, s27, v58")
    a("v_exp_f32 v58, v58"); a("v_add_f32 v58, 1.0, v58"); a("v_rcp_f32 v58, v58"); a("v_mul_f32 v58, v58, v56")
    rnd1("v58","v58"); a("v_mul_f32 v58, v58, v57")
    a(f"v_mov_b32_dpp v59, v58 row_ror:8 {DPPF}")
    a("v_cvt_pk_bf16_f32 v58, v58, v59")
    for i in range(4): a(f"v_readlane_b32 s{60+i}, v58, {16*i}")
    for i in range(4):
        for c in range(8):
            C="0" if i==0 else f"v{72+c}"
            a(f"v_dot2_f32_bf16 v{72+c}, v{DN+8*i+c}, s{60+i}, {C}")
    a(f"ds_write_b128 v11, v[72:75] offset:{L_CP}"); a(f"ds_write_b128 v11, v[76:79] offset:{L_CP+16}")
    a("s_waitcnt lgkmcnt(0)")
    barrier_nd()
    for w in range(4): a(f"ds_read_b64 v[{16+2*w}:{17+2*w}], v12 offset:{L_CP+2048*w}")
    a("s_waitcnt lgkmcnt(0)")
    a("v_pk_add_f32 v[16:17], v[16:17], v[18:19]"); a("v_pk_add_f32 v[20:21], v[20:21], v[22:23]"); a("v_pk_add_f32 v[16:17], v[16:17], v[20:21]")
    a("v_and_b32 v80, s17, v16"); a("v_and_b32 v82, s17, v17"); a("v_or_b32 v80, s19, v80"); a("v_or_b32 v82, s19, v82")
    mstore(["global_store_dwordx4 v13, v[80:83], s[8:9] sc1"])
    stamp(11)
    a("L_FIN:")
    a("s_cmp_eq_u32 s77, 1"); a("s_cbranch_scc1 L_DRYEND")
    if diag:
        a("s_getreg_b32 s14, hwreg(HW_REG_XCC_ID)"); a(f"v_writelane_b32 v{STV}, s14, 63")
        a("s_lshl_b32 s14, s76, 3"); a("s_add_u32 s14, s14, s3"); a("s_lshl_b32 s14, s14, 8"); a(f"s_add_u32 s14, s14, {STAMPS}")
        a("v_lshlrev_b32 v8, 2, v0"); a("v_add_u32 v8, s14, v8")
        a(f"global_store_dword v8, v{STV}, s[8:9]")
    a("L_END:")
    a("s_endpgm")

    def kargs():
        a("s_load_dwordx2 s[40:41], s[0:1], 0")
        a("s_load_dwordx4 s[44:47], s[0:1], 24")
        a("s_load_dwordx4 s[48:51], s[0:1], 48")
        a("s_load_dwordx4 s[52:55], s[0:1], 64")
        a("s_load_dwordx2 s[56:57], s[0:1], 80")
        a("v_mov_b32 v4, 0")
        a("v_lshlrev_b32 v5, 4, v0")
    W=48; WQ=88
    def ld_wmod():
        a("s_lshl_b32 s14, s76, 7")
        a("s_add_u32 s24, s56, s14"); a("s_addc_u32 s25, s57, 0")
        for i in range(8):
            a(f"global_load_dwordx4 v[{W+4*i}:{W+4*i+3}], v19, s[24:25] {wpol}")
            if i<7: a("s_add_u32 s24, s24, 6144"); a("s_addc_u32 s25, s25, 0")
    def silu():
        X=24
        a(f"s_mov_b32 s17, {f32(-LOG2E)}")
        for i in range(8): unpack(X+2*i,X+1+2*i,8+i)
        for i in range(16): a(f"v_mul_f32 v{124+i}, s17, v{X+i}")
        for i in range(16): a(f"v_exp_f32 v{124+i}, v{124+i}")
        for i in range(16): a(f"v_add_f32 v{124+i}, 1.0, v{124+i}")
        for i in range(16): a(f"v_rcp_f32 v{140+i}, v{124+i}")
        for i in range(16): a(f"v_mul_f32 v{156+i}, v{X+i}, v{140+i}")
        for i in range(16): a(f"v_fma_f32 v{X+i}, -v{156+i}, v{124+i}, v{X+i}")
        for i in range(16): a(f"v_fma_f32 v{X+i}, v{X+i}, v{140+i}, v{156+i}")
        for i in range(8): a(f"v_cvt_pk_bf16_f32 v{8+i}, v{X+2*i}, v{X+1+2*i}")
    def gemv16(WP, H0, H1, ACC):
        for i in range(4):
            for b,H in enumerate((H0,H1)):
                for c in range(8):
                    C = "0" if i==0 else f"v{ACC+8*b+c}"
                    a(f"v_dot2_f32_bf16 v{ACC+8*b+c}, v{WP+8*i+c}, v{H+i}, {C}")
        red16to2(list(range(ACC,ACC+16)), full=False)
        a(f"ds_write_b64 v23, v[{ACC}:{ACC+1}] offset:{L_O}")
        a("s_waitcnt lgkmcnt(0)")
        a("s_barrier")
    def sum8_store(bshift):
        for w in range(8): a(f"ds_read_b64 v[{24+2*w}:{25+2*w}], v22 offset:{L_O+512*w}")
        a(f"v_lshlrev_b32 v172, {bshift}, v21"); a("v_add_u32 v172, v172, v20"); a(f"v_add_u32 v172, s14, v172")
        a("s_waitcnt lgkmcnt(0)")
        for st in (1,2,4):
            for w in range(0,8,2*st): a(f"v_pk_add_f32 v[{24+2*w}:{25+2*w}], v[{24+2*w}:{25+2*w}], v[{24+2*(w+st)}:{25+2*(w+st)}]")
        a("v_cvt_pk_bf16_f32 v24, v24, v25"); a("v_mov_b32 v25, s20")
        a("global_store_dwordx2 v172, v[24:25], s[8:9] sc1")
    def mod_unit(lbl):
        perm8x8(W-8, W)
        gemv16(W-8, 8, 12, 24)
        a(f"s_cmp_lg_u32 s3, 0"); a(f"s_cbranch_scc1 {lbl}")
        a("s_lshr_b32 s14, s76, 3"); a("s_lshl_b32 s14, s14, 12"); a("s_and_b32 s15, s76, 7"); a("s_lshl_b32 s15, s15, 8"); a("s_add_u32 s14, s14, s15"); a(f"s_add_u32 s14, s14, {MODG}")
        sum8_store(11)
    a("L_SERV:")
    kargs()
    a("v_lshrrev_b32 v16, 3, v0"); a("s_lshl_b32 s14, s3, 3"); a("v_add_u32 v16, s14, v16")
    a("v_and_b32 v17, 7, v0"); a("v_lshlrev_b32 v17, 4, v17")
    a("v_lshlrev_b32 v18, 4, v16")
    a("s_mov_b32 s14, 49152"); a("v_mul_lo_u32 v19, v16, s14"); a("v_add_u32 v19, v19, v17")
    a("v_lshl_add_u32 v6, v16, 16, v17")
    a("s_waitcnt lgkmcnt(0)")
    if diag: a(f"v_writelane_b32 v{STV}, s94, 0")
    a("global_load_dwordx4 v[8:11], v18, s[54:55]")
    a("global_load_dwordx4 v[12:15], v18, s[54:55] offset:1024")
    a("global_load_dword v1, v4, s[8:9] sc0 sc1")
    a("s_and_b32 s14, s3, 1"); a("s_lshl_b32 s14, s14, 10")
    a("s_add_u32 s24, s40, s14"); a("s_addc_u32 s25, s41, 0")
    a("global_load_dwordx4 v[120:123], v5, s[24:25]")
    def ld_wq():
        a("s_lshl_b32 s14, s76, 7")
        a("s_add_u32 s24, s44, s14"); a("s_addc_u32 s25, s45, 0")
        for i in range(8):
            a(f"global_load_dwordx4 v[{WQ+4*i}:{WQ+4*i+3}], v6, s[24:25] {wpol}")
            if i<7: a("s_add_u32 s24, s24, 8192"); a("s_addc_u32 s25, s25, 0")
    a("s_cmp_ge_u32 s76, 16"); a("s_cbranch_scc1 L_NOMODLD")
    ld_wmod()
    a("s_branch L_LDDONE")
    a("L_NOMODLD:")
    ld_wq()
    a("L_LDDONE:")
    a("v_bfe_u32 v20, v0, 3, 2"); a("v_lshlrev_b32 v20, 3, v20"); a("v_lshl_add_u32 v20, v17, 1, v20")
    a("v_lshrrev_b32 v21, 5, v0")
    a("s_lshl_b32 s14, s3, 9"); a("v_lshlrev_b32 v22, 3, v0"); a("v_add_u32 v23, s14, v22")
    a("s_cmp_ge_u32 s76, 16"); a("s_cbranch_scc1 L_NOMOD")
    a("s_waitcnt vmcnt(9)")
    a("v_readfirstlane_b32 s20, v1")
    silu()
    a("s_add_u32 s20, s20, 1")
    a("s_waitcnt vmcnt(0)")
    ld_wq()
    stamp(15)
    mod_unit("L_MODDONE")
    stamp(16)
    a("s_branch L_MODDONE")
    a("L_NOMOD:")
    a("s_waitcnt vmcnt(8)")
    a("v_readfirstlane_b32 s20, v1")
    silu()
    a("s_add_u32 s20, s20, 1")
    a("L_MODDONE:")
    a("s_and_b32 s14, s76, 7"); a("s_or_b32 s14, s14, s3"); a("s_cmp_lg_u32 s14, 0"); a("s_cbranch_scc1 L_NOZ")
    a("s_lshr_b32 s14, s76, 3"); a("s_lshl_b32 s14, s14, 11"); a(f"s_add_u32 s14, s14, {CNT}")
    a("v_and_b32 v173, 15, v0"); a("v_lshlrev_b32 v173, 7, v173"); a("v_bfe_u32 v174, v0, 4, 1"); a("v_lshl_add_u32 v173, v174, 14, v173"); a("v_add_u32 v173, s14, v173")
    a("s_mov_b32 exec_hi, 0")
    a("global_store_dword v173, v4, s[8:9] sc1")
    a("s_mov_b64 exec, -1")
    a("L_NOZ:")
    a("s_and_b32 s14, s3, 6"); a("s_cmp_lg_u32 s14, 2"); a("s_cbranch_scc1 L_NOH")
    XX=list(range(124,132))
    for i in range(4): unpack(124+2*i,125+2*i,120+i)
    ln_stats(XX,132); ln_norm(XX,132,refine=True)
    a("L_NOH:")
    a("s_waitcnt vmcnt(0)")
    perm8x8(WQ-8, WQ)
    a("s_sub_u32 s14, s76, 16"); a("s_cmp_ge_u32 s14, 32"); a("s_cbranch_scc1 L_NOMODLD2")
    a("s_and_b32 s14, s3, 6"); a("s_cmp_eq_u32 s14, 2"); a("s_cbranch_scc1 L_HP")
    ld_wmod()
    a("s_branch L_HRDY")
    a("L_NOMODLD2:")
    a("s_and_b32 s14, s3, 6"); a("s_cmp_lg_u32 s14, 2"); a("s_cbranch_scc1 L_HRDY")
    a("L_HP:")
    a("s_and_b32 s15, s3, 1")
    stamp(17)
    shift_scale_gather(0,"s15",164,172,"H",R0=144)
    stamp(18)
    modulate(XX,list(range(172,180)),list(range(164,172)),[148,149,150,151],144)
    a("s_lshl_b32 s14, s15, 10"); a("v_add_u32 v6, s14, v5")
    a(f"ds_write_b128 v6, v[148:151] offset:{L_H}")
    a("s_sub_u32 s14, s76, 16"); a("s_cmp_ge_u32 s14, 32"); a("s_cbranch_scc1 L_HRDY")
    ld_wmod()
    a("L_HRDY:")
    a("s_waitcnt lgkmcnt(0)")
    a("s_barrier")
    a(f"ds_read_b128 v[112:115], v18 offset:{L_H}"); a(f"ds_read_b128 v[116:119], v18 offset:{L_H+1024}")
    a("s_waitcnt lgkmcnt(0)")
    gemv16(WQ-8, 112, 116, 24)
    a("s_cmp_lg_u32 s3, 0"); a("s_cbranch_scc1 L_QDONE")
    a("s_lshl_b32 s14, s76, 8"); a(f"s_add_u32 s14, s14, {QG}")
    sum8_store(14)
    stamp(19)
    a("L_QDONE:")
    a("s_sub_u32 s14, s76, 16"); a("s_cmp_ge_u32 s14, 32"); a("s_cbranch_scc1 L_SVEND")
    a("s_waitcnt vmcnt(0)")
    a("s_barrier")
    mod_unit("L_SVEND")
    a("L_SVEND:")
    a("s_cmp_lt_u32 s3, 4"); a("s_cbranch_scc1 L_STREAM")
    a("s_branch L_HELP2")

    a("L_HELP:")
    kargs()
    a("s_waitcnt lgkmcnt(0)")
    if diag: a(f"v_writelane_b32 v{STV}, s94, 0")
    a("global_load_dword v1, v4, s[8:9] sc0 sc1")
    a("s_waitcnt vmcnt(0)")
    a("v_readfirstlane_b32 s20, v1"); a("s_add_u32 s20, s20, 1")
    if qsleep: a(f"s_sleep {qsleep}")
    a("L_HELP2:")
    a("s_cmp_lg_u32 s3, 6"); a("s_cbranch_scc1 L_HBAR1")
    a("s_setprio 3")
    a("s_lshl_b32 s14, s10, 11"); a(f"s_add_u32 s14, s14, {QG}")
    a("v_lshlrev_b32 v6, 5, v0"); a("v_add_u32 v6, s14, v6")
    poll(["global_load_dwordx4 v[40:43], v6, s[8:9] sc1","global_load_dwordx4 v[44:47], v6, s[8:9] offset:16 sc1"],
         [(None,41+2*i) for i in range(4)], "Q", slp=q_sleep)
    a("v_mov_b32 v41, v42"); a("v_mov_b32 v42, v44"); a("v_mov_b32 v43, v46")
    a(f"ds_write_b128 v5, v[40:43] offset:{L_Q}")
    a(f"v_mov_b32 v8, {L_TAG}"); a("v_mov_b32 v9, s20")
    a("ds_write_b32 v8, v9")
    a("s_waitcnt lgkmcnt(0)")
    stamp(4)
    a("s_setprio 0")
    a("L_HBAR1:")
    a("s_barrier")
    if NL>0: a("s_barrier")
    R=16
    if skip_epi_w: a("s_branch L_RPRE")
    a("s_and_b32 s14, s10, 7"); a("s_lshl_b32 s14, s14, 2"); a("s_lshr_b32 s15, s11, 2"); a("s_add_u32 s14, s14, s15"); a("s_lshl_b32 s14, s14, 7")
    a("s_sub_u32 s15, s3, 4"); a("s_lshl_b32 s15, s15, 1"); a("s_add_u32 s14, s14, s15"); a("s_lshl_b32 s14, s14, 10")
    a("s_and_b32 s15, s11, 3"); a("s_lshl_b32 s15, s15, 8"); a("s_add_u32 s14, s14, s15")
    a("s_add_u32 s24, s46, s14"); a("s_addc_u32 s25, s47, 0")
    a("v_lshlrev_b32 v6, 2, v0")
    for c in range(16):
        a(f"global_load_dword v{R+c}, v6, s[24:25] {wpol}")
        a(f"global_load_dword v{R+16+c}, v6, s[24:25] offset:1024 {wpol}")
        if c<15: a("s_add_u32 s24, s24, 8192"); a("s_addc_u32 s25, s25, 0")
        if c%wo_b==wo_b-1: a("s_waitcnt vmcnt(0)"); a(f"s_sleep {pace_sleep}")
    for i in range(16): permpair(WO+i, WO+16+i, R+2*i, R+2*i+1)
    a("s_sub_u32 s13, s76, 64")
    a("s_cmp_ge_u32 s13, 56"); a("s_cbranch_scc1 L_RPRE")
    a("s_sub_u32 s14, s3, 4"); a("s_lshl_b32 s15, s14, 4")
    a("v_lshrrev_b32 v8, 2, v0"); a("v_add_u32 v8, s15, v8"); a("v_and_b32 v9, 3, v0")
    a("s_mov_b32 s16, 28672"); a("v_mul_lo_u32 v6, v8, s16"); a("v_lshl_add_u32 v6, v9, 4, v6")
    a("v_lshlrev_b32 v8, 4, v8"); a("v_lshl_add_u32 v8, v9, 13, v8"); a(f"v_add_u32 v8, {L_W}, v8")
    a("s_lshl_b32 s15, s13, 6")
    for mtx,(lo,hi) in enumerate((("s48","s49"),("s50","s51"))):
        a(f"s_add_u32 s24, {lo}, s15"); a(f"s_addc_u32 s25, {hi}, 0")
        for i in range(8):
            a(f"global_load_dwordx4 v[{56+4*i}:{59+4*i}], v6, s[24:25] {wpol}")
            if i<7: a("s_add_u32 s24, s24, 3584"); a("s_addc_u32 s25, s25, 0")
            if i%gu_b==gu_b-1: a("s_waitcnt vmcnt(0)"); a(f"s_sleep {pace_sleep}")
        perm8x8(48,56)
        for q in range(8): a(f"ds_write_b128 v8, v[{48+4*q}:{51+4*q}] offset:{32768*mtx+1024*q}")
        a("s_waitcnt lgkmcnt(0)")
    a("s_lshl_b32 s15, s13, 15"); a("s_lshl_b32 s16, s14, 13"); a("s_add_u32 s15, s15, s16")
    a("s_add_u32 s24, s52, s15"); a("s_addc_u32 s25, s53, 0")
    a("v_add_u32 v6, 0x1000, v5")
    for i in range(8):
        a(f"global_load_dwordx4 v[{56+4*i}:{59+4*i}], {'v5' if i<4 else 'v6'}, s[24:25] offset:{1024*(i%4)} {wpol}")
        if i%dn_b==dn_b-1: a("s_waitcnt vmcnt(0)"); a(f"s_sleep {pace_sleep}")
    perm8x8(48,56)
    a(f"s_add_u32 s16, s16, {L_W+65536}"); a("v_add_u32 v8, s16, v5")
    for q in range(8): a(f"ds_write_b128 v8, v[{48+4*q}:{51+4*q}] offset:{1024*q}")
    a("s_waitcnt lgkmcnt(0)")
    a("s_cmp_lt_u32 s3, 6"); a("s_cbranch_scc1 L_COMBH")
    a("s_sub_u32 s15, s3, 6")
    shift_scale_gather(3,"s15",SB,OP,"SB")
    a("s_branch L_COMBH")
    a("L_RPRE:")
    a("s_cmp_lg_u32 s3, 5"); a("s_cbranch_scc1 L_COMBH")
    a("s_sub_u32 s13, s76, 128"); a("s_cmp_ge_u32 s13, 64"); a("s_cbranch_scc1 L_COMBH")
    a("s_lshl_b32 s15, s13, 6"); a(f"s_add_u32 s15, s15, {MODG+2*4096}")
    a("v_and_b32 v12, 7, v0"); a("v_lshlrev_b32 v6, 3, v12"); a("v_add_u32 v6, s15, v6"); a(f"v_add_u32 v13, {3*4096}, v6")
    poll(["global_load_dwordx2 v[40:41], v6, s[8:9] sc1","global_load_dwordx2 v[42:43], v13, s[8:9] sc1"],[(None,41),(None,43)],"GA")
    a("v_lshrrev_b32 v8, 5, v0"); a("v_lshlrev_b32 v9, 4, v8"); a("v_sub_u32 v9, 16, v9")
    a(f"v_lshlrev_b32 v{GA}, v9, v40"); a(f"v_and_b32 v{GA}, 0xffff0000, v{GA}")
    a(f"v_lshlrev_b32 v{GB}, v9, v42"); a(f"v_and_b32 v{GB}, 0xffff0000, v{GB}")
    a("v_lshl_add_u32 v6, v12, 1, v8")
    a("s_lshl_b32 s15, s13, 4"); a(f"v_add_u32 v{IDX}, s15, v6")
    a(f"v_lshlrev_b32 v6, 1, v{IDX}")
    a(f"global_load_ushort v{XV}, v6, s[40:41]")
    a("s_waitcnt vmcnt(0)")
    a(f"v_lshlrev_b32 v{XV}, 16, v{XV}")
    a("L_COMBH:")
    if dry:
        a("s_mov_b32 s77, 1"); a("s_mov_b64 s[78:79], 0"); a("s_mov_b32 s80, 0")
        a("s_branch L_SDONE")
    a("L_DRYEND:")
    a("s_mov_b32 s77, 0"); a("s_mov_b64 s[78:79], -1"); a(f"s_mov_b32 s80, {POLL_LIMIT}")
    stamp(5)
    a("s_setprio 3")
    a("s_branch L_COMB")

    body=a.text()
    out=HEADER+"; Generated by gen/gen5.py (own generator script).\n"
    out+=f"; @launch grid=(256,1,1) block=(512,1,1) lds={LDS_BYTES}\n"
    out+='.amdgcn_target "amdgcn-amd-amdhsa--gfx950"\n.text\n'
    out+=f".globl {KN}\n.p2align 8\n.type {KN},@function\n"+body
    out+=f'''.section .rodata,"a"
.p2align 6
.amdhsa_kernel {KN}
  .amdhsa_next_free_vgpr 256
  .amdhsa_next_free_sgpr 102
  .amdhsa_accum_offset 256
  .amdhsa_group_segment_fixed_size 0
  .amdhsa_kernarg_size 112
  .amdhsa_user_sgpr_count 2
  .amdhsa_user_sgpr_kernarg_segment_ptr 1
  .amdhsa_system_sgpr_workgroup_id_x 1
  .amdhsa_float_denorm_mode_32 3
.end_amdhsa_kernel
'''
    return out

if __name__=="__main__":
    import argparse
    ap=argparse.ArgumentParser(); ap.add_argument("out"); ap.add_argument("--diag",action="store_true"); ap.add_argument("--opt",default="")
    args=ap.parse_args()
    kw=eval("dict("+args.opt+")")
    open(args.out,"w").write(gen(diag=args.diag,**kw))
```

```python
import sys, struct
sys.path.insert(0, "gen")
from asmlib import Asm

KN = "adaLN_cond__gqa_block_cached__glu_gated_geglu__decode_kernel"
def f32(x): return "0x%08x" % struct.unpack("<I", struct.pack("<f", x))[0]

EPOCH=0x0; CNT=0x1000; MODG=0xA000; QG=0x10000; X1G=0x20000; SCG=0x30000; STG=0x40000
PARTG=0x100000; BPG=0x200000; DPG=0x280000; STAMPS=0x800000
T0=0x5A
LOG2E=1.4426950408889634
L_Q=0; L_TAG=1024; L_F=1040; L_A=1184; L_Z=1168; L_H=1312; L_ST=3360; L_O=3584; L_B=11776; L_W=13824
F_PART=L_F; F_H=L_F+16; F_B=L_F+32; F_WO=L_F+48; F_CW=L_F+64; F_S=L_F+80; F_GO=L_F+52; F_X=L_F+56; F_P=L_F+96; F_BK=L_F+112
GU_STRIDE=1040; DN_OFF=64*GU_STRIDE; DN_STRIDE=80
NREP=8

HEADER = open("adaLN_cond__gqa_block_cached__glu_gated_geglu__decode.s.ref").read().split("; Override launch")[0]

def gen(diag=False, NS=(30,26,28,31), POLL_LIMIT=200000, wpol="nt", NL=4, PD=4, SREP=4,
        b_sleep=0, c_sleep=0, f_sleep=0, c_pre=0, f_pre=0, qsleep=0, h_sleep=0, q_sleep=0, hpre=0, trig_early=0, hold=16, BTHR=2, probe_sleep=6, pd1=(), cw_when='bstore', c_noclaim=False, dn_late=False, touch=False, wo_when='pub', holdq=True, lastd1=0, cw_delay=40, cw_sleep=8):
    a=Asm()
    STV=7
    LDS_BYTES=L_W+max(DN_OFF+512*DN_STRIDE, 4*8192*NL)
    assert LDS_BYTES<=163840
    NPRE=5+NL
    def stamp(idx):
        if not diag: return
        a("s_memrealtime s[96:97]")
        a("s_waitcnt lgkmcnt(0)")
        a(f"v_writelane_b32 v{STV}, s96, {idx}")
    def rnd_bf16_pair(dst0,dst1,s0,s1,tmp):
        a(f"v_cvt_pk_bf16_f32 {tmp}, {s0}, {s1}")
        a(f"v_lshlrev_b32 {dst0}, 16, {tmp}")
        a(f"v_and_b32 {dst1}, 0xffff0000, {tmp}")
    def rnd1(dst,src):
        a(f"v_cvt_pk_bf16_f32 {dst}, {src}, {src}")
        a(f"v_and_b32 {dst}, 0xffff0000, {dst}")
    DPPF="row_mask:0xf bank_mask:0xf"
    def red16to2(V):
        for t in range(4):
            for e in range(2): a(f"v_permlane32_swap_b32 v{V[2*t+e]}, v{V[2*(t+4)+e]}")
        for t in range(4):
            for e in range(2): a(f"v_add_f32 v{V[2*t+e]}, v{V[2*t+e]}, v{V[2*(t+4)+e]}")
        for t in range(2):
            for e in range(2): a(f"v_permlane16_swap_b32 v{V[2*t+e]}, v{V[2*(t+2)+e]}")
        for t in range(2):
            for e in range(2): a(f"v_add_f32 v{V[2*t+e]}, v{V[2*t+e]}, v{V[2*(t+2)+e]}")
        for e in range(2): a(f"v_add_f32_dpp v{V[e]}, v{V[e]}, v{V[e]} row_ror:8 row_mask:0xf bank_mask:0x3")
        for e in range(2): a(f"v_add_f32_dpp v{V[e]}, v{V[2+e]}, v{V[2+e]} row_ror:8 row_mask:0xf bank_mask:0xc")
    def do_checks(checks):
        first1=True; first0=True
        for (w0,w1) in checks:
            if first1: a(f"v_xor_b32 v2, s20, v{w1}"); first1=False
            else: a(f"v_bitop3_b32 v2, v2, v{w1}, s20 bitop3:0xf6")
            if w0 is not None:
                if first0: a(f"v_xor_b32 v3, s19, v{w0}"); first0=False
                else: a(f"v_bitop3_b32 v3, v3, v{w0}, s19 bitop3:0xf6")
        if not first0:
            a("v_and_b32 v3, 0xff, v3"); a("v_or_b32 v2, v2, v3")
        a("v_cmp_ne_u32 vcc, 0, v2")
    def poll(loads, checks, name, slp=0):
        L=a.lab("POLL"+name); D=a.lab("PD"+name)
        a(f"s_mov_b32 s21, {POLL_LIMIT}")
        a(f"{L}:")
        for l in loads: a(l)
        a("s_waitcnt vmcnt(0)")
        do_checks(checks)
        a(f"s_cbranch_vccz {D}")
        if slp: a(f"s_sleep {slp}")
        a("s_sub_u32 s21, s21, 1")
        a(f"s_cbranch_scc0 {L}")
        a(f"{D}:")
    def flag_set(off, idxs=None, va=2, vd=3):
        a("s_waitcnt lgkmcnt(0)")
        if idxs is None: a(f"v_mov_b32 v{va}, 0")
        else: a(f"s_lshl_b32 s14, {idxs}, 2"); a(f"v_mov_b32 v{va}, s14")
        a(f"v_mov_b32 v{vd}, 1")
        a(f"ds_write_b32 v{va}, v{vd} offset:{off}")
    def flag_wait(off, n, name, slp=0, t=60):
        L=a.lab("FW"+name); D=a.lab("FD"+name)
        a(f"s_mov_b32 s21, {POLL_LIMIT*8}"); a(f"v_mov_b32 v{t+4}, 0")
        a(f"{L}:")
        if n==4: a(f"ds_read_b128 v[{t}:{t+3}], v{t+4} offset:{off}")
        elif n==2: a(f"ds_read_b64 v[{t}:{t+1}], v{t+4} offset:{off}")
        else: a(f"ds_read_b32 v{t}, v{t+4} offset:{off}")
        a("s_waitcnt lgkmcnt(0)")
        if n==4: a(f"v_and_b32 v{t}, v{t}, v{t+1}"); a(f"v_bitop3_b32 v{t}, v{t}, v{t+2}, v{t+3} bitop3:0x80")
        elif n==2: a(f"v_and_b32 v{t}, v{t}, v{t+1}")
        a(f"v_cmp_ne_u32 vcc, 1, v{t}")
        a(f"s_cbranch_vccz {D}")
        if slp: a(f"s_sleep {slp}")
        a("s_sub_u32 s21, s21, 1")
        a(f"s_cbranch_scc0 {L}")
        a(f"{D}:")
    def ln_stats(X, tmp):
        d=tmp+2
        a(f"v_readfirstlane_b32 s30, v{X[0]}")
        for i in range(8): a(f"v_subrev_f32 v{d+i}, s30, v{X[i]}")
        s1=tmp; s2=tmp+1
        a(f"v_add_f32 v{s1}, v{d}, v{d+1}")
        a(f"v_mul_f32 v{s2}, v{d}, v{d}")
        for i in range(1,8):
            if i>=2: a(f"v_add_f32 v{s1}, v{s1}, v{d+i}")
            a(f"v_fmac_f32 v{s2}, v{d+i}, v{d+i}")
        for m in ("quad_perm:[1,0,3,2]","quad_perm:[2,3,0,1]","row_half_mirror","row_mirror"):
            a(f"v_add_f32_dpp v{s1}, v{s1}, v{s1} {m} {DPPF}")
            a(f"v_add_f32_dpp v{s2}, v{s2}, v{s2} {m} {DPPF}")
        a(f"v_permlane16_swap_b32 v{s1}, v{s2}")
        a(f"v_add_f32 v{s1}, v{s1}, v{s2}")
        a(f"v_mov_b32 v{s2}, v{s1}")
        a(f"v_permlane32_swap_b32 v{s1}, v{s2}")
        a(f"v_add_f32 v{s1}, v{s1}, v{s2}")
        a(f"s_mov_b32 s33, {f32(1.0/512)}")
        a(f"v_mul_f32 v{s1}, s33, v{s1}")
        a(f"v_readlane_b32 s31, v{s1}, 0")
        a(f"v_readlane_b32 s32, v{s1}, 16")
        a(f"v_mov_b32 v{d}, s31"); a(f"v_mov_b32 v{d+1}, s32")
        a(f"v_add_f32 v{s1}, s30, v{d}")
        a(f"v_fma_f32 v{s2}, -v{d}, v{d}, v{d+1}")
        a(f"v_max_f32 v{s2}, 0, v{s2}")
        rnd_bf16_pair(f"v{s1}",f"v{s2}",f"v{s1}",f"v{s2}",f"v{d}")
        a(f"v_add_f32 v{s2}, {f32(1e-5)}, v{s2}")
        rnd1(f"v{s2}",f"v{s2}")
        a(f"v_sqrt_f32 v{s2}, v{s2}")
        rnd1(f"v{tmp+10}",f"v{s2}")
        a(f"v_rcp_f32 v{s2}, v{tmp+10}")
    def ln_norm(X, tmp, refine=False):
        t=tmp+2
        for i in range(8): a(f"v_sub_f32 v{X[i]}, v{X[i]}, v{tmp}")
        for i in range(0,8,2): rnd_bf16_pair(f"v{X[i]}",f"v{X[i+1]}",f"v{X[i]}",f"v{X[i+1]}",f"v{t+i//2}")
        if refine:
            for i in range(8): a(f"v_mul_f32 v{t+i}, v{X[i]}, v{tmp+1}")
            for i in range(8): a(f"v_fma_f32 v{X[i]}, -v{t+i}, v{tmp+10}, v{X[i]}")
            for i in range(8): a(f"v_fma_f32 v{X[i]}, v{X[i]}, v{tmp+1}, v{t+i}")
        else:
            for i in range(8): a(f"v_mul_f32 v{X[i]}, v{X[i]}, v{tmp+1}")
        for i in range(0,8,2): rnd_bf16_pair(f"v{X[i]}",f"v{X[i+1]}",f"v{X[i]}",f"v{X[i+1]}",f"v{t+i//2}")
    def modulate(X, OP, SH, OUT, tmp):
        for i in range(8): a(f"v_mul_f32 v{X[i]}, v{X[i]}, v{OP[i]}")
        for i in range(0,8,2): rnd_bf16_pair(f"v{X[i]}",f"v{X[i+1]}",f"v{X[i]}",f"v{X[i+1]}",f"v{tmp+i//2}")
        for i in range(8): a(f"v_add_f32 v{X[i]}, v{X[i]}, v{SH[i]}")
        for i in range(0,8,2): a(f"v_cvt_pk_bf16_f32 v{OUT[i//2]}, v{X[i]}, v{X[i+1]}")
    def unpack(dst0,dst1,src):
        a(f"v_lshlrev_b32 v{dst0}, 16, v{src}"); a(f"v_and_b32 v{dst1}, 0xffff0000, v{src}")
    def permpair(lo,hi,A,B):
        a(f"v_perm_b32 v{lo}, v{B}, v{A}, s22"); a(f"v_perm_b32 v{hi}, v{B}, v{A}, s23")
    def perm8x8(dst, raw):
        for i in range(4):
            for d in range(4): permpair(dst+8*i+2*d, dst+8*i+2*d+1, raw+8*i+d, raw+8*i+4+d)
    def trans8x8(dst, raw):
        for i in range(4):
            for d in range(4): permpair(dst+4*(2*d)+i, dst+4*(2*d+1)+i, raw+8*i+d, raw+8*i+4+d)
    def shift_scale_gather(base_s, SHv, OPv, name, R0=40, slp=0):
        a("v_lshlrev_b32 v6, 5, v0"); a(f"v_add_u32 v6, {base_s}, v6"); a(f"v_add_u32 v{R0+16}, 0x1000, v6")
        poll([f"global_load_dwordx4 v[{R0}:{R0+3}], v6, s[8:9] sc1",f"global_load_dwordx4 v[{R0+4}:{R0+7}], v6, s[8:9] offset:16 sc1",
              f"global_load_dwordx4 v[{R0+8}:{R0+11}], v{R0+16}, s[8:9] sc1",f"global_load_dwordx4 v[{R0+12}:{R0+15}], v{R0+16}, s[8:9] offset:16 sc1"],
             [(None,R0+1+2*i) for i in range(8)], name, slp=slp)
        for i in range(4): unpack(SHv+2*i,SHv+1+2*i,R0+2*i)
        for i in range(4): unpack(OPv+2*i,OPv+1+2*i,R0+8+2*i)
        for i in range(8): a(f"v_add_f32 v{OPv+i}, 1.0, v{OPv+i}")
        for i in range(0,8,2): rnd_bf16_pair(f"v{OPv+i}",f"v{OPv+1+i}",f"v{OPv+i}",f"v{OPv+1+i}",f"v{R0+i//2}")

    a(f"{KN}:")
    a("s_cmp_ge_u32 s2, 256")
    a("s_cbranch_scc1 L_END")
    if diag: a("s_memrealtime s[94:95]")
    a("s_load_dwordx4 s[4:7], s[0:1], 8")
    a("s_load_dwordx2 s[8:9], s[0:1], 104")
    a("s_load_dwordx4 s[56:59], s[0:1], 80")
    a("s_load_dwordx4 s[52:55], s[0:1], 64")
    a("s_load_dwordx4 s[44:47], s[0:1], 24")
    a("s_load_dwordx4 s[48:51], s[0:1], 48")
    a("s_load_dwordx2 s[40:41], s[0:1], 0")
    a("v_lshrrev_b32 v1, 6, v0")
    a("v_and_b32 v0, 63, v0")
    a("v_readfirstlane_b32 s3, v1")
    a("s_mov_b32 s76, s2")
    a("s_and_b32 s11, s2, 7"); a("s_lshr_b32 s12, s2, 3")
    a("s_lshl_b32 s10, s11, 1"); a("s_add_u32 s10, s10, s12"); a("s_and_b32 s10, s10, 15")
    a("s_lshr_b32 s12, s2, 7"); a("s_lshl_b32 s12, s12, 3"); a("s_add_u32 s11, s11, s12")
    a("s_lshr_b32 s12, s10, 3")
    a("s_lshl_b32 s2, s10, 4"); a("s_add_u32 s2, s2, s11")
    a("s_mov_b32 s22, 0x05040100"); a("s_mov_b32 s23, 0x07060302")
    a(f"s_mov_b32 s19, {T0}"); a("s_mov_b32 s17, 0xffffff00"); a(f"s_mov_b32 s35, {f32(LOG2E)}")
    a("v_mov_b32 v4, 0"); a("v_lshlrev_b32 v5, 4, v0")
    if diag: a(f"v_mov_b32 v{STV}, 0")
    a("s_cmp_ge_u32 s3, 4")
    a("s_cbranch_scc1 L_HELP")
    Q=8; O=24; S=56; TM=60; P=70; M=72; MB=73; LS=74; AL=75; T=76
    WK=96; WV=112; LK=128; LV=144; SL=[160,192,224]
    a("v_and_b32 v2, 3, v0"); a("v_lshlrev_b32 v2, 10, v2")
    a("v_bfe_u32 v3, v0, 2, 2"); a("v_lshl_add_u32 v1, v3, 8, v2")
    a("v_lshrrev_b32 v3, 4, v0"); a("v_lshl_add_u32 v1, v3, 4, v1")
    a("s_lshl_b32 s13, s11, 2"); a("s_add_u32 s13, s13, s3")
    a("s_lshl_b32 s14, s10, 23")
    a("s_lshl_b32 s15, s13, 12")
    a("s_waitcnt lgkmcnt(0)")
    a("s_add_u32 s4, s4, s14"); a("s_addc_u32 s5, s5, 0")
    a("s_add_u32 s6, s6, s14"); a("s_addc_u32 s7, s7, 0")
    def ldK(r):
        a("s_add_u32 s24, s4, s15"); a("s_addc_u32 s25, s5, 0")
        for s in range(4): a(f"global_load_dwordx4 v[{r+4*s}:{r+4*s+3}], v1, s[24:25] offset:{64*s} nt")
    def ldV(r):
        a("s_add_u32 s26, s6, s15"); a("s_addc_u32 s27, s7, 0")
        for j in range(4): a(f"global_load_dwordx4 v[{r+4*j}:{r+4*j+3}], v5, s[26:27] offset:{1024*j} nt")
    a("s_lshr_b32 s16, s76, 6"); a(f"s_cmp_eq_u32 s16, {1 if holdq else 9}"); a("s_cselect_b32 s16, 1, 0")
    a(f"s_cmp_lt_u32 s76, {hold}"); a("s_cselect_b32 s16, 1, s16")
    a("s_cmp_eq_u32 s16, 0"); a("s_cbranch_scc1 L_NOHOLD"); a("s_barrier"); a("s_barrier"); a("L_NOHOLD:")
    ldK(WK); ldV(WV)
    a("s_cmp_eq_u32 s16, 1"); a("s_cbranch_scc1 L_NOB0")
    a("s_barrier")
    a("L_NOB0:")
    if diag: a(f"v_writelane_b32 v{STV}, s94, 0")
    for i in range(16): a(f"v_mov_b32 v{Q+i}, 0")
    for i in range(32): a(f"v_mov_b32 v{O+i}, 0")
    a(f"v_mov_b32 v{M}, 0xff800000"); a(f"v_mov_b32 v{MB}, 0xff800000"); a(f"v_mov_b32 v{LS}, 0")
    a("s_and_b32 s86, s13, 15")
    a("s_lshl_b32 s16, s10, 4"); a("s_add_u32 s16, s16, s86"); a("s_lshl_b32 s16, s16, 7"); a(f"s_add_u32 s16, s16, {CNT}")
    a("s_add_u32 s28, s8, s16"); a("s_addc_u32 s29, s9, 0")
    packed=sum((NS[c]-1)<<(8*c) for c in range(4))
    a("s_lshr_b32 s16, s76, 6"); a("s_lshl_b32 s16, s16, 3"); a(f"s_lshr_b32 s87, {packed}, s16"); a("s_and_b32 s87, s87, 0xff")
    a("s_sub_u32 s88, s87, 1")
    a("s_and_b32 s16, s11, 3"); a("s_lshl_b32 s16, s16, 1"); a("s_sub_u32 s16, s10, s16"); a("s_bfe_u32 s89, s16, 0x10003")
    a("s_lshr_b32 s16, s76, 6"); a(f"s_cmp_eq_u32 s16, {2 if c_noclaim else 9}"); a("s_cselect_b32 s91, 1, 0")
    a("s_cselect_b32 s88, 0xff, s88")
    a(f"s_mov_b32 s34, {f32(128**-0.5)}")
    a(f"s_mul_i32 s39, s3, {8192*NL}"); a(f"s_add_u32 s39, s39, {L_W}")
    pm=sum(1<<c for c in pd1)
    a("s_lshr_b32 s16, s76, 6"); a(f"s_lshr_b32 s93, {pm}, s16"); a("s_and_b32 s93, s93, 1")
    npc=[2]
    def pace():
        npc[0]+=1
        if len(pd1)==4 or npc[0]>2*NPRE-lastd1: a("s_waitcnt vmcnt(0)"); return
        a(f"s_waitcnt vmcnt({PD})")
        if pd1:
            L=a.lab("PC"); a("s_cmp_eq_u32 s93, 0"); a(f"s_cbranch_scc1 {L}"); a("s_waitcnt vmcnt(0)"); a(f"{L}:")
    seq=[("r",SL[0]),("r",SL[1]),("r",SL[2])]+[("l",i) for i in range(NL)]+[("r",LK)]
    for (kind,k) in seq:
        a(f"s_add_u32 s15, s15, {64*4096}")
        pace()
        if kind=="r": ldK(k)
        else:
            a("s_add_u32 s24, s4, s15"); a("s_addc_u32 s25, s5, 0")
            for q in range(4):
                a(f"s_add_u32 m0, s39, {8192*k+1024*q-64*q}"); a("s_nop 0")
                a(f"global_load_lds_dwordx4 v1, s[24:25] offset:{64*q} nt")
        pace()
        if kind=="r": ldV(k+16)
        else:
            a("s_add_u32 s26, s6, s15"); a("s_addc_u32 s27, s7, 0")
            a(f"s_add_u32 m0, s39, {8192*k+4096}"); a("s_nop 0")
            for q in range(4): a(f"global_load_lds_dwordx4 v5, s[26:27] offset:{1024*q} nt")
    stamp(1)
    if PD>4: a("s_waitcnt vmcnt(8)")
    a("s_barrier")
    a("v_and_b32 v2, 15, v0"); a("v_lshlrev_b32 v6, 8, v2"); a("v_lshrrev_b32 v56, 4, v0"); a("v_lshl_add_u32 v6, v56, 4, v6")
    a(f"ds_read_b32 v58, v4 offset:{L_TAG}")
    a("v_cmp_gt_u32 vcc, 4, v2")
    a("s_and_saveexec_b64 s[36:37], vcc")
    for s in range(4): a(f"ds_read_b128 v[{Q+4*s}:{Q+4*s+3}], v6 offset:{L_Q+64*s}")
    a("s_mov_b64 exec, s[36:37]")
    a(f"s_mov_b32 s18, {NPRE-1}")
    if diag: a("s_mov_b32 s92, 0")
    sched=[]; nb=3+NL
    while nb>0:
        sched.append(0)
        for _ in range(2):
            if nb>0: sched.append(1); nb-=1
    mask=sum(bit<<(i+1) for i,bit in enumerate(sched))
    a(f"s_mov_b32 s84, {mask}"); a("s_mov_b32 s85, 0")
    a("v_add_u32 v92, s39, v5")
    a("s_waitcnt lgkmcnt(0)")
    a("v_readfirstlane_b32 s20, v58")
    stamp(2)
    def qk(r):
        a(f"v_mfma_f32_16x16x32_bf16 v[{S}:{S+3}], v[{r}:{r+3}], v[{Q}:{Q+3}], 0")
        for s in range(1,4): a(f"v_mfma_f32_16x16x32_bf16 v[{S}:{S+3}], v[{r+4*s}:{r+4*s+3}], v[{Q+4*s}:{Q+4*s+3}], v[{S}:{S+3}]")
    def perms(r):
        for d in range(4):
            a(f"v_perm_b32 v{T+4*d}, v{r+4+d}, v{r+d}, s22")
            a(f"v_perm_b32 v{T+4*d+1}, v{r+12+d}, v{r+8+d}, s22")
            a(f"v_perm_b32 v{T+4*d+2}, v{r+4+d}, v{r+d}, s23")
            a(f"v_perm_b32 v{T+4*d+3}, v{r+12+d}, v{r+8+d}, s23")
    a("s_branch L_REGIT")
    a("L_PERMW:")
    perms(WV)
    a("s_branch L_PV")
    a("L_BACK:")
    a("s_add_u32 s85, s85, 1")
    a("s_cmp_eq_u32 s85, 1"); a("s_cbranch_scc1 L_CP0")
    a("s_cmp_eq_u32 s85, 2"); a("s_cbranch_scc1 L_CP1")
    a("s_cmp_eq_u32 s85, 3"); a("s_cbranch_scc1 L_CP2")
    for q in range(8): a(f"ds_read_b128 v[{WK+4*q}:{WK+4*q+3}], v92 offset:{1024*q}")
    a("v_add_u32 v92, 0x2000, v92")
    a(f"s_cmp_lg_u32 s85, {3+NL}")
    a("s_waitcnt lgkmcnt(0)")
    a("s_cbranch_scc1 L_REGIT")
    a("s_lshl_b32 s16, s3, 2"); a("v_mov_b32 v2, s16"); a("v_mov_b32 v3, 1"); a(f"ds_write_b32 v2, v3 offset:{F_BK}")
    a("s_branch L_REGIT")
    for i in range(3):
        a(f"L_CP{i}:")
        for j in range(16): a(f"v_mov_b64 v[{WK+2*j}:{WK+2*j+1}], v[{SL[i]+2*j}:{SL[i]+2*j+1}]")
        if i<2: a("s_branch L_REGIT")
    a("L_REGIT:")
    a("s_mov_b32 s38, 1")
    qk(WK)
    a("s_nop 6")
    a("s_branch L_SOFT")
    d=[32-n for n in NS]; cum=[0,d[0],d[0]+d[1],d[0]+d[1]+d[2],sum(d)]
    a("L_DYN:")
    a("s_mov_b32 s38, 2")
    a("s_cmp_eq_u32 s91, 1"); a("s_cbranch_scc1 L_TRIG")
    a("s_waitcnt lgkmcnt(0)")
    a(f"s_cmp_ge_u32 s90, {cum[4]}"); a("s_cbranch_scc1 L_TRIG")
    a(f"s_add_u32 s15, s89, {4*(NS[0]-cum[0])}")
    a(f"s_sub_u32 s16, {1+4*(NS[1]-cum[1])}, s89"); a(f"s_cmp_ge_u32 s90, {cum[1]}"); a("s_cselect_b32 s15, s16, s15")
    a(f"s_add_u32 s16, s89, {2+4*(NS[2]-cum[2])}"); a(f"s_cmp_ge_u32 s90, {cum[2]}"); a("s_cselect_b32 s15, s16, s15")
    a(f"s_sub_u32 s16, {3+4*(NS[3]-cum[3])}, s89"); a(f"s_cmp_ge_u32 s90, {cum[3]}"); a("s_cselect_b32 s15, s16, s15")
    a("s_lshl_b32 s16, s90, 2"); a("s_add_u32 s15, s15, s16")
    a("s_lshl_b32 s15, s15, 4"); a("s_add_u32 s15, s15, s86"); a("s_lshl_b32 s15, s15, 12")
    a("s_mov_b32 s38, 0")
    a("s_branch L_HAVE")
    a("L_TRIG:")
    if wo_when=='exh': a("v_mov_b32 v3, 1"); a(f"ds_write_b32 v4, v3 offset:{F_X}")
    a("s_branch L_SOFT")
    a("L_LOOP:")
    a("s_lshr_b32 s84, s84, 1")
    a("s_bitcmp1_b32 s84, 0"); a("s_cbranch_scc1 L_BACK")
    a("s_waitcnt vmcnt(4)")
    qk(LK)
    a("s_mov_b32 s38, 0")
    a(f"s_add_u32 s15, s15, {64*4096}")
    a("s_cmp_ge_u32 s18, s87"); a("s_cbranch_scc1 L_DYN")
    a("L_HAVE:")
    ldK(LK)
    a("s_cmp_lt_u32 s18, s88"); a("s_cbranch_scc1 L_NOCL")
    a("s_mov_b32 s90, 1")
    a("s_atomic_add s90, s[28:29], 0 glc")
    a("L_NOCL:")
    if trig_early:
        a(f"s_add_u32 s16, s18, {trig_early}"); a("s_cmp_lg_u32 s16, s87"); a("s_cbranch_scc1 L_NOTR")
        a("v_mov_b32 v3, 1"); a(f"ds_write_b32 v4, v3 offset:{F_WO}")
        a("L_NOTR:")
    a("s_add_u32 s18, s18, 1")
    a("L_SOFT:")
    x=[TM,TM+1,TM+2,TM+3]
    rnd_bf16_pair(f"v{x[0]}",f"v{x[1]}",f"v{S}",f"v{S+1}",f"v{TM+4}")
    rnd_bf16_pair(f"v{x[2]}",f"v{x[3]}",f"v{S+2}",f"v{S+3}",f"v{TM+5}")
    for i in range(4): a(f"v_mul_f32 v{x[i]}, s34, v{x[i]}")
    rnd_bf16_pair(f"v{x[0]}",f"v{x[1]}",f"v{x[0]}",f"v{x[1]}",f"v{TM+4}")
    rnd_bf16_pair(f"v{x[2]}",f"v{x[3]}",f"v{x[2]}",f"v{x[3]}",f"v{TM+5}")
    a(f"v_max3_f32 v{TM+4}, v{x[0]}, v{x[1]}, v{x[2]}")
    a(f"v_max3_f32 v{TM+4}, v{TM+4}, v{x[3]}, v{M}")
    a(f"v_mov_b32 v{TM+5}, v{TM+4}")
    a(f"v_permlane32_swap_b32 v{TM+4}, v{TM+5}")
    a(f"v_max_f32 v{TM+4}, v{TM+4}, v{TM+5}")
    a(f"v_mov_b32 v{TM+5}, v{TM+4}")
    a(f"v_permlane16_swap_b32 v{TM+4}, v{TM+5}")
    a(f"v_max_f32 v{M}, v{TM+4}, v{TM+5}")
    a(f"v_mul_f32 v{TM+4}, s35, v{M}")
    a(f"v_sub_f32 v{AL}, v{MB}, v{TM+4}")
    a(f"v_mov_b32 v{MB}, v{TM+4}")
    a(f"v_exp_f32 v{AL}, v{AL}")
    for i in range(4): a(f"v_fma_f32 v{x[i]}, v{x[i]}, s35, -v{MB}")
    for i in range(4): a(f"v_exp_f32 v{x[i]}, v{x[i]}")
    for i in range(0,32,2): a(f"v_pk_mul_f32 v[{O+i}:{O+i+1}], v[{O+i}:{O+i+1}], v[{AL-1}:{AL}] op_sel:[0,1] op_sel_hi:[1,1]")
    a(f"v_mul_f32 v{LS}, v{LS}, v{AL}")
    a(f"v_add_f32 v{TM+4}, v{x[0]}, v{x[1]}"); a(f"v_add_f32 v{TM+5}, v{x[2]}, v{x[3]}")
    a(f"v_cvt_pk_bf16_f32 v{P}, v{x[0]}, v{x[1]}"); a(f"v_cvt_pk_bf16_f32 v{P+1}, v{x[2]}, v{x[3]}")
    a(f"v_add_f32 v{TM+4}, v{TM+4}, v{TM+5}"); a(f"v_add_f32 v{LS}, v{LS}, v{TM+4}")
    a("s_cmp_eq_u32 s38, 1"); a("s_cbranch_scc1 L_PERMW")
    a("s_cmp_eq_u32 s38, 0"); a("s_cbranch_scc1 L_W4")
    a("s_waitcnt vmcnt(0)")
    a("L_W4:"); a("s_waitcnt vmcnt(4)")
    perms(LV)
    a("s_cmp_eq_u32 s38, 2"); a("s_cbranch_scc1 L_PV")
    ldV(LV)
    a("L_PV:")
    for t in range(8): a(f"v_mfma_f32_16x16x16_bf16 v[{O+4*t}:{O+4*t+3}], v[{T+2*t}:{T+2*t+1}], v[{P}:{P+1}], v[{O+4*t}:{O+4*t+3}]")
    if diag:
        a("s_memrealtime s[96:97]"); a("s_add_u32 m0, s92, 20"); a("s_min_u32 m0, m0, 55"); a("s_waitcnt lgkmcnt(0)"); a(f"v_writelane_b32 v{STV}, s96, m0")
        a("s_add_u32 s92, s92, 1")
    a("s_cmp_lg_u32 s38, 2"); a("s_cbranch_scc1 L_LOOP")
    stamp(3)
    if diag: a(f"v_writelane_b32 v{STV}, s92, 62")
    a(f"v_mov_b32 v{TM}, v{LS}"); a(f"v_permlane32_swap_b32 v{LS}, v{TM}"); a(f"v_add_f32 v{LS}, v{LS}, v{TM}")
    a(f"v_mov_b32 v{TM}, v{LS}"); a(f"v_permlane16_swap_b32 v{LS}, v{TM}"); a(f"v_add_f32 v{M+1}, v{LS}, v{TM}")
    a("v_and_b32 v1, 15, v0"); a("v_lshrrev_b32 v6, 4, v0")
    a("s_lshl_b32 s14, s3, 11")
    a("v_lshlrev_b32 v56, 9, v1"); a("v_lshl_add_u32 v56, v6, 4, v56"); a("v_add_u32 v56, s14, v56")
    a("s_lshl_b32 s14, s3, 3")
    a("v_lshlrev_b32 v57, 5, v1"); a("v_add_u32 v57, s14, v57")
    a("v_cmp_gt_u32 vcc, 4, v1")
    a("s_and_saveexec_b64 s[36:37], vcc")
    for t in range(8): a(f"ds_write_b128 v56, v[{O+4*t}:{O+4*t+3}] offset:{L_O+64*t}")
    a(f"ds_write_b64 v57, v[{M}:{M+1}] offset:{L_ST}")
    a("s_mov_b64 exec, s[36:37]")
    a("s_lshl_b32 s16, s3, 9"); a("v_lshlrev_b32 v8, 3, v0"); a("v_add_u32 v8, s16, v8")
    a("s_lshl_b32 s16, s3, 5"); a("v_mov_b32 v9, s16")
    a("s_lshl_b32 s16, s10, 2"); a("s_add_u32 s16, s16, s3"); a("s_lshl_b32 s14, s16, 6"); a("s_add_u32 s14, s14, s11"); a("s_lshl_b32 s14, s14, 8"); a(f"s_add_u32 s14, s14, {PARTG}")
    a("v_lshlrev_b32 v10, 12, v6"); a("v_lshl_add_u32 v10, v1, 4, v10"); a("v_add_u32 v10, s14, v10")
    a("s_lshl_b32 s16, s16, 4"); a("s_add_u32 s16, s16, s11"); a("s_lshl_b32 s16, s16, 7"); a(f"s_add_u32 s16, s16, {STG}")
    a("v_mov_b32 v11, s16")
    a("v_mov_b32 v81, s20"); a("v_mov_b32 v83, s20"); a("v_mov_b32 v85, s20"); a("v_mov_b32 v87, s20")
    flag_set(F_S,"s3")
    flag_wait(F_S,4,"S",t=88)
    stamp(6)
    a(f"ds_read_b128 v[60:63], v9 offset:{L_ST}"); a(f"ds_read_b128 v[64:67], v9 offset:{L_ST+16}")
    for w in range(4): a(f"ds_read_b64 v[{68+2*w}:{69+2*w}], v8 offset:{L_O+2048*w}")
    a("s_waitcnt lgkmcnt(4)")
    a("v_max3_f32 v84, v60, v62, v64"); a("v_max_f32 v84, v84, v66")
    a("v_mul_f32 v12, s35, v84")
    for w in range(4): a(f"v_mul_f32 v{60+2*w}, s35, v{60+2*w}")
    for w in range(4): a(f"v_sub_f32 v{60+2*w}, v{60+2*w}, v12")
    for w in range(4): a(f"v_exp_f32 v{60+2*w}, v{60+2*w}")
    a("s_waitcnt lgkmcnt(0)")
    a("v_mul_f32 v80, v60, v68"); a("v_mul_f32 v82, v60, v69"); a("v_mul_f32 v86, v60, v61")
    for w in range(1,4):
        a(f"v_fmac_f32 v80, v{60+2*w}, v{68+2*w}"); a(f"v_fmac_f32 v82, v{60+2*w}, v{69+2*w}"); a(f"v_fmac_f32 v86, v{60+2*w}, v{61+2*w}")
    a("v_and_b32 v80, s17, v80"); a("v_and_b32 v82, s17, v82"); a("v_or_b32 v80, s19, v80"); a("v_or_b32 v82, s19, v82")
    a("global_store_dwordx4 v10, v[80:83], s[8:9] sc1")
    a("v_and_b32 v86, s17, v86"); a("v_or_b32 v86, s19, v86"); a("v_or_b32 v84, s19, v84")
    a("s_mov_b64 exec, 1")
    a("global_store_dwordx4 v11, v[84:87], s[8:9] sc1")
    a("s_mov_b64 exec, -1")
    a("s_lshl_b32 s14, s3, 2"); a("v_mov_b32 v2, s14"); a("v_mov_b32 v3, 1"); a(f"ds_write_b32 v2, v3 offset:{F_P}")
    stamp(7)
    a("s_bfe_u32 s14, s76, 0x20004"); a("s_lshl_b32 s13, s14, 4"); a("s_and_b32 s14, s76, 7"); a("s_lshl_b32 s14, s14, 1"); a("s_add_u32 s13, s13, s14"); a("s_bfe_u32 s14, s76, 0x10003"); a("s_add_u32 s13, s13, s14"); a("s_lshr_b32 s14, s76, 6"); a("s_cmp_eq_u32 s14, 2"); a("s_cselect_b32 s13, s13, 99")
    a("s_cmp_ge_u32 s13, 56"); a("s_cbranch_scc1 L_FIN")
    a("v_and_b32 v1, 15, v0"); a("v_lshrrev_b32 v2, 4, v0")
    a(f"v_mul_u32_u24 v10, {GU_STRIDE}, v1"); a("v_lshl_add_u32 v10, v2, 4, v10"); a(f"s_mul_i32 s16, s3, {16*GU_STRIDE}"); a(f"s_add_u32 s16, s16, {L_W}"); a("v_add_u32 v10, s16, v10")
    a(f"v_mul_u32_u24 v11, {DN_STRIDE}, v1"); a("v_lshl_add_u32 v11, v2, 4, v11"); a(f"s_mul_i32 s16, s3, {128*DN_STRIDE}"); a(f"s_add_u32 s16, s16, {L_W+DN_OFF}"); a("v_add_u32 v11, s16, v11")
    a("v_and_b32 v3, 1, v0"); a("v_lshlrev_b32 v12, 10, v3"); a("v_lshl_add_u32 v12, v2, 4, v12")
    a("v_lshlrev_b32 v13, 6, v3"); a("v_lshl_add_u32 v14, v2, 4, v13"); a(f"v_add_u32 v14, {L_A}, v14")
    a("v_lshl_add_u32 v13, v2, 2, v13"); a("s_lshl_b32 s16, s3, 4"); a("v_add_u32 v13, s16, v13")
    a(f"v_mov_b32 v15, {L_Z}"); a("v_bfe_u32 v3, v0, 1, 3")
    for q in range(4):
        a(f"v_cmp_eq_u32 vcc, {2*q}, v3"); a(f"v_cndmask_b32 v{16+q}, v15, v14, vcc")
    a("v_cmp_gt_u32 s[42:43], 2, v1")
    a("s_mul_i32 s14, s3, 57344"); a("s_lshl_b32 s15, s13, 7"); a("s_add_u32 s14, s14, s15"); a(f"s_add_u32 s14, s14, {DPG}")
    a("v_mul_u32_u24 v24, 7168, v2"); a("v_lshl_add_u32 v24, v1, 3, v24"); a("v_add_u32 v24, s14, v24")
    a("v_add_u32 v25, 28672, v24"); a("v_add_u32 v26, 229376, v24"); a("v_add_u32 v27, 229376, v25")
    for i in range(4): a(f"v_mov_b32 v{33+2*i}, s20")
    a(f"s_mov_b32 s26, {f32(0.044715)}"); a(f"s_mov_b32 s27, {f32(-2.0*0.7978845608028654*LOG2E)}")
    flag_wait(F_CW,4,"CW",t=88)
    FA=96; FD=160; FH=192
    for i in range(16): a(f"ds_read_b128 v[{FA+4*i}:{FA+4*i+3}], v10 offset:{64*i}")
    for t in range(8): a(f"ds_read_b128 v[{FD+4*t}:{FD+4*t+3}], v11 offset:{16*DN_STRIDE*t}")
    a("s_waitcnt lgkmcnt(0)")
    stamp(15)
    a("s_barrier")
    stamp(14)
    for i in range(16): a(f"ds_read_b128 v[{FH+4*i}:{FH+4*i+3}], v12 offset:{L_H+64*i}")
    for i in range(16):
        a(f"s_waitcnt lgkmcnt({15-i})")
        a(f"v_mfma_f32_16x16x32_bf16 v[40:43], v[{FA+4*i}:{FA+4*i+3}], v[{FH+4*i}:{FH+4*i+3}], {'0' if i==0 else 'v[40:43]'}")
    rnd_bf16_pair("v40","v41","v40","v41","v44"); rnd_bf16_pair("v42","v43","v42","v43","v45")
    for (g,o) in ((40,44),(42,45)): a(f"v_mul_f32 v{o}, v{g}, v{g}")
    for (g,o) in ((40,44),(42,45)): a(f"v_fma_f32 v{o}, v{o}, s26, 1.0")
    for (g,o) in ((40,44),(42,45)): a(f"v_mul_f32 v{o}, v{o}, v{g}")
    for (g,o) in ((40,44),(42,45)): a(f"v_mul_f32 v{o}, s27, v{o}")
    for (g,o) in ((40,44),(42,45)): a(f"v_exp_f32 v{o}, v{o}")
    for (g,o) in ((40,44),(42,45)): a(f"v_add_f32 v{o}, 1.0, v{o}")
    for (g,o) in ((40,44),(42,45)): a(f"v_rcp_f32 v{o}, v{o}")
    for (g,o) in ((40,44),(42,45)): a(f"v_mul_f32 v{o}, v{o}, v{g}")
    rnd_bf16_pair("v44","v45","v44","v45","v46")
    a("v_mul_f32 v44, v44, v41"); a("v_mul_f32 v45, v45, v43")
    a("v_cvt_pk_bf16_f32 v44, v44, v45")
    a("s_mov_b64 exec, s[42:43]")
    a(f"ds_write_b32 v13, v44 offset:{L_A}")
    a("s_mov_b64 exec, -1")
    a("s_waitcnt lgkmcnt(0)")
    a("s_barrier")
    for q in range(4): a(f"ds_read_b128 v[{48+4*q}:{51+4*q}], v{16+q}")
    for q in range(4):
        a(f"s_waitcnt lgkmcnt({3-q})")
        for h in range(2):
            a(f"v_mfma_f32_16x16x32_bf16 v[{64+4*h}:{67+4*h}], v[{48+4*q}:{51+4*q}], v[{FD+4*(4*h+q)}:{FD+4*(4*h+q)+3}], {'0' if q==0 else f'v[{64+4*h}:{67+4*h}]'}")
    for i,(src) in enumerate((64,68,65,69)):
        a(f"v_and_b32 v{32+2*i}, s17, v{src}")
    for i in range(4): a(f"v_or_b32 v{32+2*i}, s19, v{32+2*i}")
    for i in range(4): a(f"global_store_dwordx2 v{24+i}, v[{32+2*i}:{33+2*i}], s[8:9] sc1")
    stamp(11)
    a("L_FIN:")
    if diag:
        a("s_getreg_b32 s14, hwreg(HW_REG_XCC_ID)"); a(f"v_writelane_b32 v{STV}, s14, 63")
        a("s_lshl_b32 s14, s76, 3"); a("s_add_u32 s14, s14, s3"); a("s_lshl_b32 s14, s14, 8"); a(f"s_add_u32 s14, s14, {STAMPS}")
        a("v_lshlrev_b32 v8, 2, v0"); a("v_add_u32 v8, s14, v8")
        a(f"global_store_dword v8, v{STV}, s[8:9]")
    a("L_END:")
    a("s_endpgm")

    WO=224; SB=208; OP=216; GA=208; GB=209; XV=210; IDX=211; X1V=212
    RAW=136
    a("L_HELP:")
    a("s_setprio 3")
    a("v_min_u32 v2, 39, v0"); a("v_lshlrev_b32 v2, 2, v2"); a(f"ds_write_b32 v2, v4 offset:{L_TAG}")
    a("s_sub_u32 s18, s3, 4")
    a("v_lshrrev_b32 v16, 3, v0"); a("s_lshl_b32 s14, s18, 3"); a("v_add_u32 v16, s14, v16")
    a("v_and_b32 v17, 7, v0"); a("v_lshlrev_b32 v17, 4, v17")
    a("v_lshlrev_b32 v18, 5, v16")
    a("s_waitcnt lgkmcnt(0)")
    if diag: a(f"v_writelane_b32 v{STV}, s94, 0")
    a("s_cmp_lt_u32 s76, 48"); a("s_cbranch_scc1 L_MOD")
    a("global_load_dword v1, v4, s[8:9] sc0 sc1")
    a("s_lshr_b32 s14, s76, 6"); a("s_cmp_eq_u32 s14, 1"); a("s_cbranch_scc1 L_QU")
    a("s_barrier")
    a("s_waitcnt vmcnt(0)")
    a("v_readfirstlane_b32 s20, v1"); a("s_add_u32 s20, s20, 1")
    if qsleep: a(f"s_sleep {qsleep}")
    a("s_branch L_HELP2")
    def slab_loads(lo,hi,stride):
        a(f"s_mov_b32 s14, {16*stride}"); a("v_mul_lo_u32 v19, v16, s14"); a("v_add_u32 v19, v19, v17")
        a("s_and_b32 s14, s76, 63"); a("s_lshl_b32 s14, s14, 7")
        a(f"s_add_u32 s24, {lo}, s14"); a(f"s_addc_u32 s25, {hi}, 0")
        for i in range(16):
            a(f"global_load_dwordx4 v[{RAW+4*i}:{RAW+4*i+3}], v19, s[24:25] {wpol}")
            if i<15: a(f"s_add_u32 s24, s24, {stride}"); a("s_addc_u32 s25, s25, 0")
        a("s_barrier")
        a("v_bfe_u32 v20, v0, 3, 2"); a("v_lshlrev_b32 v20, 3, v20"); a("v_lshl_add_u32 v20, v17, 1, v20")
        a("v_lshrrev_b32 v21, 5, v0")
        a("s_lshl_b32 s14, s18, 9"); a("v_lshlrev_b32 v22, 3, v0"); a("v_add_u32 v23, s14, v22")
    def silu(src):
        X=56
        for i in range(8): unpack(X+2*i,X+1+2*i,src+i)
        for i in range(16): a(f"v_mul_f32 v{72+i}, s16, v{X+i}")
        for i in range(16): a(f"v_exp_f32 v{72+i}, v{72+i}")
        for i in range(16): a(f"v_add_f32 v{72+i}, 1.0, v{72+i}")
        for i in range(16): a(f"v_rcp_f32 v{88+i}, v{72+i}")
        for i in range(16): a(f"v_mul_f32 v{104+i}, v{X+i}, v{88+i}")
        for i in range(16): a(f"v_fma_f32 v{X+i}, -v{104+i}, v{72+i}, v{X+i}")
        for i in range(16): a(f"v_fma_f32 v{X+i}, v{X+i}, v{88+i}, v{104+i}")
        for i in range(8): a(f"v_cvt_pk_bf16_f32 v{src+i}, v{X+2*i}, v{X+1+2*i}")
    def gemv_publish(H0,H1,lbl,bshift,reps,name):
        ACC=56
        for i in range(8):
            for b,H in enumerate((H0,H1)):
                for c in range(8):
                    C = "0" if i==0 else f"v{ACC+8*b+c}"
                    a(f"v_dot2_f32_bf16 v{ACC+8*b+c}, v{RAW-8+8*i+c}, v{H+i}, {C}")
        red16to2(list(range(ACC,ACC+16)))
        a(f"ds_write_b64 v23, v[{ACC}:{ACC+1}] offset:{L_B}")
        flag_set(F_PART,"s18")
        a("s_cmp_lg_u32 s18, 0"); a(f"s_cbranch_scc1 {lbl}")
        a(f"v_lshlrev_b32 v72, {bshift}, v21"); a("v_add_u32 v72, v72, v20"); a("v_add_u32 v72, s15, v72")
        flag_wait(F_PART,4,name,t=64)
        for w in range(4): a(f"ds_read_b64 v[{56+2*w}:{57+2*w}], v22 offset:{L_B+512*w}")
        a("s_waitcnt lgkmcnt(0)")
        a("v_pk_add_f32 v[56:57], v[56:57], v[58:59]"); a("v_pk_add_f32 v[60:61], v[60:61], v[62:63]"); a("v_pk_add_f32 v[56:57], v[56:57], v[60:61]")
        a("v_cvt_pk_bf16_f32 v56, v56, v57"); a("v_mov_b32 v57, s20")
        a("global_store_dwordx2 v72, v[56:57], s[8:9] sc1")
    a("L_MOD:")
    a("global_load_dwordx4 v[24:27], v18, s[54:55]"); a("global_load_dwordx4 v[28:31], v18, s[54:55] offset:16")
    a("global_load_dwordx4 v[32:35], v18, s[54:55] offset:1024"); a("global_load_dwordx4 v[36:39], v18, s[54:55] offset:1040")
    a("global_load_dword v1, v4, s[8:9] sc0 sc1")
    slab_loads("s56","s57",6144)
    a(f"s_mov_b32 s16, {f32(-LOG2E)}")
    a("s_waitcnt vmcnt(16)")
    a("v_readfirstlane_b32 s20, v1")
    silu(24); silu(32)
    a("s_add_u32 s20, s20, 1")
    a("s_waitcnt vmcnt(8)")
    perm8x8(RAW-8,RAW)
    a("s_waitcnt vmcnt(0)")
    stamp(15)
    if hold:
        a(f"s_cmp_ge_u32 s76, {hold}"); a("s_cbranch_scc1 L_NOHOLD2"); a("s_barrier"); a("L_NOHOLD2:")
    perm8x8(RAW+24,RAW+32)
    a("s_lshr_b32 s15, s76, 3"); a("s_lshl_b32 s15, s15, 12"); a("s_and_b32 s14, s76, 7"); a("s_lshl_b32 s14, s14, 8"); a("s_add_u32 s15, s15, s14")
    a("s_cmp_lt_u32 s76, 16"); a(f"s_cselect_b32 s14, {SCG-MODG}, 0"); a("s_add_u32 s15, s15, s14"); a(f"s_add_u32 s15, s15, {MODG}")
    gemv_publish(24,32,"L_HELP2",11,1,"M")
    a("s_cmp_ge_u32 s76, 16"); a("s_cbranch_scc1 L_HELP2")
    for r in range(1,SREP):
        a(f"v_add_u32 v72, 0x2000, v72"); a("global_store_dwordx2 v72, v[56:57], s[8:9] sc1")
    stamp(16)
    a("s_branch L_HELP2")
    a("L_QU:")
    a("s_and_b32 s14, s3, 1"); a("s_lshl_b32 s14, s14, 10")
    a("s_add_u32 s24, s40, s14"); a("s_addc_u32 s25, s41, 0")
    a("global_load_dwordx4 v[24:27], v5, s[24:25]")
    slab_loads("s44","s45",8192)
    a("s_and_b32 s14, s76, 7"); a("s_or_b32 s14, s14, s18"); a("s_cmp_lg_u32 s14, 0"); a("s_cbranch_scc1 L_NOZ")
    a("s_bfe_u32 s14, s76, 0x30003"); a("s_lshl_b32 s14, s14, 11"); a(f"s_add_u32 s14, s14, {CNT}")
    a("v_and_b32 v28, 15, v0"); a("v_lshlrev_b32 v28, 7, v28"); a("v_bfe_u32 v29, v0, 4, 1"); a("v_lshl_add_u32 v28, v29, 14, v28"); a("v_add_u32 v28, s14, v28")
    a("s_mov_b32 exec_hi, 0")
    a("global_store_dword v28, v4, s[8:9] sc1")
    a("s_mov_b64 exec, -1")
    a("L_NOZ:")
    a("s_waitcnt vmcnt(16)")
    a("v_readfirstlane_b32 s20, v1"); a("s_add_u32 s20, s20, 1")
    XX=list(range(32,40))
    for i in range(4): unpack(32+2*i,33+2*i,24+i)
    ln_stats(XX,40); ln_norm(XX,40,refine=True)
    a("s_waitcnt vmcnt(0)")
    perm8x8(RAW-8,RAW); perm8x8(RAW+24,RAW+32)
    a("s_cmp_lt_u32 s3, 6"); a("s_cbranch_scc1 L_HW")
    a("s_and_b32 s15, s3, 1"); a("s_lshl_b32 s14, s15, 11"); a(f"s_and_b32 s16, s76, {SREP-1}"); a("s_lshl_b32 s16, s16, 13"); a("s_add_u32 s14, s14, s16"); a(f"s_add_u32 s14, s14, {SCG}")
    stamp(17)
    if hpre: a(f"s_sleep {hpre}")
    shift_scale_gather("s14",80,88,"H",R0=56,slp=h_sleep)
    stamp(18)
    modulate(XX,list(range(88,96)),list(range(80,88)),[60,61,62,63],56)
    a("s_lshl_b32 s14, s15, 10"); a("v_add_u32 v6, s14, v5")
    a(f"ds_write_b128 v6, v[60:63] offset:{L_H}")
    flag_set(F_H,"s15")
    a("L_HW:")
    flag_wait(F_H,2,"H",t=64)
    a(f"ds_read_b128 v[24:27], v18 offset:{L_H}"); a(f"ds_read_b128 v[28:31], v18 offset:{L_H+16}")
    a(f"ds_read_b128 v[32:35], v18 offset:{L_H+1024}"); a(f"ds_read_b128 v[36:39], v18 offset:{L_H+1040}")
    a("s_and_b32 s15, s76, 63"); a("s_lshl_b32 s15, s15, 8"); a(f"s_add_u32 s15, s15, {QG}")
    a("s_waitcnt lgkmcnt(0)")
    gemv_publish(24,32,"L_QEND",14,1,"Q")
    stamp(19)
    a("L_QEND:")
    if holdq: a("s_barrier")
    a("L_HELP2:")
    a("s_cmp_lg_u32 s3, 6"); a("s_cbranch_scc1 L_HBAR1")
    a("s_lshl_b32 s14, s10, 11"); a(f"s_add_u32 s14, s14, {QG}")
    a("v_lshlrev_b32 v6, 5, v0"); a("v_add_u32 v6, s14, v6")
    poll(["global_load_dwordx4 v[40:43], v6, s[8:9] sc1","global_load_dwordx4 v[44:47], v6, s[8:9] offset:16 sc1"],
         [(None,41+2*i) for i in range(4)], "Q", slp=q_sleep)
    a("v_mov_b32 v41, v42"); a("v_mov_b32 v42, v44"); a("v_mov_b32 v43, v46")
    a(f"ds_write_b128 v5, v[40:43] offset:{L_Q}")
    a("v_mov_b32 v9, s20")
    a(f"ds_write_b32 v4, v9 offset:{L_TAG}")
    a("s_waitcnt lgkmcnt(0)")
    stamp(4)
    a("L_HBAR1:")
    a("s_barrier")
    a("s_lshr_b32 s14, s76, 6"); a("s_cmp_eq_u32 s14, 3"); a("s_cbranch_scc1 L_RPRE")
    a("s_bfe_u32 s14, s76, 0x20004"); a("s_lshl_b32 s13, s14, 4"); a("s_and_b32 s14, s76, 7"); a("s_lshl_b32 s14, s14, 1"); a("s_add_u32 s13, s13, s14"); a("s_bfe_u32 s14, s76, 0x10003"); a("s_add_u32 s13, s13, s14"); a("s_lshr_b32 s14, s76, 6"); a("s_cmp_eq_u32 s14, 2"); a("s_cselect_b32 s13, s13, 99"); a("s_cmp_ge_u32 s13, 56"); a("s_cbranch_scc1 L_WOW")
    RG=96; TR=128
    a("s_setprio 0")
    flag_wait(F_BK,4,"BK",slp=8,t=64)
    if cw_delay: a(f"s_sleep {cw_delay}")
    a("s_lshl_b32 s15, s18, 4")
    a("v_lshrrev_b32 v8, 2, v0"); a("v_add_u32 v8, s15, v8"); a("v_and_b32 v9, 3, v0")
    a("s_mov_b32 s16, 28672"); a("v_mul_lo_u32 v6, v8, s16"); a("v_lshl_add_u32 v6, v9, 4, v6")
    a(f"v_mul_u32_u24 v9, {16*GU_STRIDE}, v9"); a("v_lshl_add_u32 v8, v8, 4, v9"); a(f"v_add_u32 v8, {L_W}, v8")
    a(f"v_mul_u32_u24 v9, {8*DN_STRIDE}, v0"); a("s_lshl_b32 s16, s18, 4"); a(f"s_add_u32 s16, s16, {L_W+DN_OFF}"); a("v_add_u32 v9, s16, v9")
    a("s_lshl_b32 s15, s13, 6")
    for mtx,(lo,hi) in enumerate((("s48","s49"),("s50","s51"))):
        a(f"s_add_u32 s24, {lo}, s15"); a(f"s_addc_u32 s25, {hi}, 0")
        for i in range(8):
            a(f"global_load_dwordx4 v[{RG+4*i}:{RG+4*i+3}], v6, s[24:25] {wpol}")
            if i<7: a("s_add_u32 s24, s24, 3584"); a("s_addc_u32 s25, s25, 0")
            if i%4==3: a("s_waitcnt vmcnt(0)"); a(f"s_sleep {cw_sleep}")
        trans8x8(TR,RG)
        for t in range(8): a(f"ds_write_b128 v8, v[{TR+4*t}:{TR+4*t+3}] offset:{(2*t+mtx)*GU_STRIDE}")
        a("s_waitcnt lgkmcnt(0)")
    a("s_lshl_b32 s15, s13, 15"); a("s_lshl_b32 s16, s18, 13"); a("s_add_u32 s15, s15, s16")
    a("s_add_u32 s24, s52, s15"); a("s_addc_u32 s25, s53, 0")
    a("v_add_u32 v6, 0x1000, v5")
    for i in range(8):
        a(f"global_load_dwordx4 v[{RG+4*i}:{RG+4*i+3}], {'v5' if i<4 else 'v6'}, s[24:25] offset:{1024*(i%4)} {wpol}")
        if i%4==3: a("s_waitcnt vmcnt(0)"); a(f"s_sleep {cw_sleep}")
    trans8x8(TR,RG)
    for t in range(8): a(f"ds_write_b128 v9, v[{TR+4*t}:{TR+4*t+3}] offset:{t*DN_STRIDE}")
    flag_set(F_CW,"s18")
    a("s_cmp_lt_u32 s3, 6"); a("s_cbranch_scc1 L_WOW")
    a("s_and_b32 s15, s3, 1"); a("s_lshl_b32 s14, s15, 11"); a(f"s_add_u32 s14, s14, {MODG+3*4096}")
    shift_scale_gather("s14",SB,OP,"SB",slp=8)
    a("s_branch L_WOW")
    a("L_RPRE:")
    a("s_cmp_lg_u32 s3, 5"); a("s_cbranch_scc1 L_WOW")
    a("s_and_b32 s13, s76, 63")
    a("s_lshl_b32 s15, s13, 6"); a(f"s_add_u32 s15, s15, {MODG+2*4096}")
    a("v_and_b32 v12, 7, v0"); a("v_lshlrev_b32 v6, 3, v12"); a("v_add_u32 v6, s15, v6"); a(f"v_add_u32 v13, {3*4096}, v6")
    poll(["global_load_dwordx2 v[40:41], v6, s[8:9] sc1","global_load_dwordx2 v[42:43], v13, s[8:9] sc1"],[(None,41),(None,43)],"GA",slp=8)
    a("v_lshrrev_b32 v8, 5, v0"); a("v_lshlrev_b32 v9, 4, v8"); a("v_sub_u32 v9, 16, v9")
    a(f"v_lshlrev_b32 v{GA}, v9, v40"); a(f"v_and_b32 v{GA}, 0xffff0000, v{GA}")
    a(f"v_lshlrev_b32 v{GB}, v9, v42"); a(f"v_and_b32 v{GB}, 0xffff0000, v{GB}")
    a("v_lshl_add_u32 v6, v12, 1, v8")
    a("s_lshl_b32 s15, s13, 4"); a(f"v_add_u32 v{IDX}, s15, v6")
    a(f"v_lshlrev_b32 v6, 1, v{IDX}")
    a(f"global_load_ushort v{XV}, v6, s[40:41]")
    a("s_waitcnt vmcnt(0)")
    a(f"v_lshlrev_b32 v{XV}, 16, v{XV}")
    a("L_WOW:")
    a("s_and_b32 s14, s2, 0xfc"); a("s_add_u32 s14, s14, s18"); a("s_lshl_b32 s14, s14, 12"); a(f"s_add_u32 s14, s14, {PARTG}")
    a("v_lshrrev_b32 v8, 5, v0"); a("v_lshlrev_b32 v9, 11, v8"); a("v_and_b32 v10, 31, v0"); a("v_lshl_add_u32 v9, v10, 3, v9"); a("v_add_u32 v9, s14, v9")
    a("s_lshr_b32 s14, s2, 2"); a("s_lshl_b32 s14, s14, 11"); a(f"s_add_u32 s14, s14, {STG}")
    a("v_and_b32 v10, 15, v0"); a("v_lshlrev_b32 v11, 3, v8"); a("v_xor_b32 v10, v10, v11"); a("v_lshlrev_b32 v10, 7, v10"); a("v_add_u32 v10, s14, v10")
    a("s_lshl_b32 s14, s12, 5"); a("s_and_b32 s15, s11, 3"); a("s_lshl_b32 s15, s15, 3"); a("s_add_u32 s14, s14, s15"); a("s_lshl_b32 s14, s14, 5")
    a("s_bfe_u32 s15, s2, 0x50002"); a("s_add_u32 s14, s14, s15"); a("s_lshl_b32 s14, s14, 7"); a(f"s_add_u32 s14, s14, {BPG}")
    a("v_lshrrev_b32 v11, 3, v0"); a("v_lshlrev_b32 v11, 12, v11"); a("v_and_b32 v12, 7, v0"); a("v_lshl_add_u32 v11, v12, 4, v11"); a("v_add_u32 v11, s14, v11")
    a("s_lshl_b32 s14, s18, 9"); a("v_lshlrev_b32 v13, 3, v0"); a("v_and_b32 v12, 15, v0"); a("v_lshlrev_b32 v12, 5, v12"); a("v_lshrrev_b32 v14, 4, v0"); a("v_lshl_add_u32 v12, v14, 3, v12"); a("v_add_u32 v12, s14, v12")
    a("s_bfe_u32 s14, s2, 0x50002"); a("s_lshl_b32 s14, s14, 7"); a("s_lshl_b32 s15, s18, 1"); a("s_add_u32 s14, s14, s15"); a("s_lshl_b32 s14, s14, 10")
    a("s_and_b32 s15, s11, 3"); a("s_lshl_b32 s15, s15, 8"); a("s_add_u32 s14, s14, s15")
    a("s_add_u32 s24, s46, s14"); a("s_addc_u32 s25, s47, 0")
    a("v_lshrrev_b32 v6, 5, v0"); a("v_lshlrev_b32 v6, 16, v6"); a("v_bfe_u32 v14, v0, 4, 1"); a("v_lshl_add_u32 v6, v14, 10, v6"); a("v_and_b32 v14, 15, v0"); a("v_lshl_add_u32 v6, v14, 4, v6")
    a("s_setprio 0")
    if touch:
        a("v_and_b32 v64, 1, v0"); a("v_lshlrev_b32 v64, 16, v64")
        a(f"global_load_dword v65, v64, s[24:25] {wpol}")
        a("v_min_u32 v64, 27, v0"); a("v_lshlrev_b32 v64, 16, v64")
        a("s_lshr_b32 s14, s76, 6"); a("s_cmp_lg_u32 s14, 2"); a("s_cbranch_scc1 L_NOTOUCH")
        a(f"global_load_dword v65, v64, s[48:49] {wpol}")
        a(f"global_load_dword v66, v64, s[50:51] {wpol}")
        a(f"global_load_dword v67, v64, s[52:53] {wpol}")
        a("L_NOTOUCH:")
        a("s_waitcnt vmcnt(0)")
    if wo_when=='pub': flag_wait(F_P,4,"S2",slp=2,t=64)
    elif wo_when=='sync': flag_wait(F_S,4,"S2",slp=2,t=64)
    else: flag_wait(F_X,1,"S2",slp=2,t=64)
    a("s_setprio 3")
    R=96
    for i in range(8):
        a(f"global_load_dwordx4 v[{R+4*i}:{R+4*i+3}], v6, s[24:25] {wpol}")
        if i<7: a("s_add_u32 s24, s24, 8192"); a("s_addc_u32 s25, s25, 0")
    for c in range(8): a(f"v_mov_b32 v{40+c}, 0")
    a("s_mov_b32 s81, 0")
    a(f"s_mov_b32 s80, {POLL_LIMIT}")
    if wo_when=='exh':
        a("s_waitcnt vmcnt(0)")
        perm8x8(WO,R)
        stamp(5)
        flag_wait(F_P,4,"S3",slp=1,t=64)
    else:
        a("global_load_dwordx4 v[32:35], v10, s[8:9] sc1")
        for i in range(8): a(f"global_load_dwordx2 v[{16+2*i}:{17+2*i}], v9, s[8:9] offset:{256*i} sc1")
        a("s_waitcnt vmcnt(9)")
        perm8x8(WO,R)
        stamp(5)
        a("s_branch L_BCHK")
    a("L_BPOLL:")
    a("global_load_dwordx4 v[32:35], v10, s[8:9] sc1")
    for i in range(8): a(f"global_load_dwordx2 v[{16+2*i}:{17+2*i}], v9, s[8:9] offset:{256*i} sc1")
    a("L_BCHK:")
    a("s_waitcnt vmcnt(0)")
    do_checks([(32,33),(34,35)]+[(16+2*i,17+2*i) for i in range(8)])
    a("s_cbranch_vccz L_BDONE")
    a("s_cmp_eq_u32 s81, 1"); a("s_cbranch_scc1 L_BAGAIN")
    a("s_mov_b32 s81, 1")
    a("s_cmp_lg_u32 s18, 0"); a("s_cbranch_scc1 L_BGO")
    a(f"s_mov_b32 s21, {POLL_LIMIT}")
    a("L_BPROBE:")
    a("v_cmp_ne_u32 vcc, s20, v35")
    a("s_bcnt1_i32_b32 s14, vcc_lo")
    a(f"s_cmp_le_u32 s14, {2*BTHR}"); a("s_cbranch_scc1 L_BPD")
    a(f"s_sleep {probe_sleep}")
    a("global_load_dwordx4 v[32:35], v10, s[8:9] sc1")
    a("s_waitcnt vmcnt(0)")
    a("s_sub_u32 s21, s21, 1"); a("s_cbranch_scc0 L_BPROBE")
    a("L_BPD:")
    a("v_mov_b32 v3, 1"); a(f"ds_write_b32 v4, v3 offset:{F_GO}")
    a("s_branch L_BPOLL")
    a("L_BGO:")
    flag_wait(F_GO,1,"GO",slp=1,t=64)
    a("L_BAGAIN:")
    if b_sleep: a(f"s_sleep {b_sleep}")
    a("s_sub_u32 s80, s80, 1"); a("s_cbranch_scc0 L_BPOLL")
    a("L_BDONE:")
    a("v_mov_b32 v3, 1"); a(f"ds_write_b32 v4, v3 offset:{F_GO}")
    stamp(8)
    a("v_and_b32 v32, 0xffff0000, v32")
    a("v_mov_b32 v36, v32")
    ms=["quad_perm:[1,0,3,2]","quad_perm:[2,3,0,1]","row_half_mirror","row_mirror"]
    for m in ms: a(f"v_max_f32_dpp v36, v36, v36 {m} {DPPF}")
    a("v_mul_f32 v32, s35, v32"); a("v_mul_f32 v36, s35, v36"); a("v_sub_f32 v32, v32, v36"); a("v_exp_f32 v32, v32")
    a("v_mul_f32 v34, v34, v32")
    a("v_mul_f32_dpp v36, v32, v16 row_newbcast:0 "+DPPF)
    for i in range(1,8):
        a(f"v_fmac_f32_dpp v36, v32, v{16+2*i} row_newbcast:{i} {DPPF}")
        if i%2==1: a(f"v_add_f32_dpp v34, v34, v34 {ms[i//2]} {DPPF}")
    a("v_mov_b32 v37, v36"); a("v_rcp_f32 v34, v34"); a("v_permlane32_swap_b32 v36, v37"); a("v_add_f32 v36, v36, v37")
    a("v_mul_f32 v36, v36, v34")
    a(f"v_mov_b32_dpp v37, v36 quad_perm:[1,0,3,2] {DPPF}")
    a("v_cvt_pk_bf16_f32 v36, v36, v37")
    a("v_mov_b32_dpp v36, v36 row_ror:8 row_mask:0xc bank_mask:0xf")
    for i in range(4):
        for c in range(8): a(f"v_dot2c_f32_bf16_dpp v{40+c}, v36, v{WO+8*i+c} row_newbcast:{2*i} {DPPF}")
    for c in range(4): a(f"v_permlane32_swap_b32 v{40+c}, v{44+c}")
    for c in range(4): a(f"v_add_f32 v{40+c}, v{40+c}, v{44+c}")
    for c in range(2): a(f"v_permlane16_swap_b32 v{40+c}, v{42+c}")
    for c in range(2): a(f"v_add_f32 v{40+c}, v{40+c}, v{42+c}")
    a(f"ds_write_b64 v12, v[40:41] offset:{L_B}")
    flag_set(F_B,"s18")
    a("s_cmp_lg_u32 s18, 0"); a("s_cbranch_scc1 L_BX")
    a("v_mov_b32 v41, s20"); a("v_mov_b32 v43, s20")
    flag_wait(F_B,4,"B",t=64)
    for w in range(4): a(f"ds_read_b64 v[{16+2*w}:{17+2*w}], v13 offset:{L_B+512*w}")
    a("s_waitcnt lgkmcnt(0)")
    a("v_pk_add_f32 v[16:17], v[16:17], v[18:19]"); a("v_pk_add_f32 v[20:21], v[20:21], v[22:23]"); a("v_pk_add_f32 v[16:17], v[16:17], v[20:21]")
    a("v_and_b32 v40, s17, v16"); a("v_and_b32 v42, s17, v17"); a("v_or_b32 v40, s19, v40"); a("v_or_b32 v42, s19, v42")
    a("global_store_dwordx4 v11, v[40:43], s[8:9] sc1")
    stamp(9)
    a("s_branch L_FIN")
    a("L_BX:")
    a("s_cmp_ge_u32 s3, 6"); a("s_cbranch_scc1 L_CP")
    a("s_lshr_b32 s14, s76, 6"); a("s_cmp_lg_u32 s14, 3"); a("s_cbranch_scc1 L_FIN")
    def colreduce(v0_,v1_,tmp):
        a(f"v_permlane32_swap_b32 v{v0_}, v{v1_}"); a(f"v_add_f32 v{v0_}, v{v0_}, v{v1_}")
        a(f"v_mov_b32 v{tmp}, v{v0_}"); a(f"v_permlane16_swap_b32 v{v0_}, v{tmp}"); a(f"v_add_f32 v{v0_}, v{v0_}, v{tmp}")
        a(f"v_add_f32_dpp v{v0_}, v{v0_}, v{v0_} row_ror:8 {DPPF}")
    def treesum(base, n):
        idx=list(range(n))
        while len(idx)>1:
            nxt=[]
            for i in range(0,len(idx)-1,2):
                for o in (0,2): a(f"v_add_f32 v{base+4*idx[i]+o}, v{base+4*idx[i]+o}, v{base+4*idx[i+1]+o}")
                nxt.append(idx[i])
            if len(idx)%2: nxt.append(idx[-1])
            idx=nxt
    a("s_and_b32 s13, s76, 63")
    a("s_lshl_b32 s14, s13, 12"); a(f"s_add_u32 s14, s14, {BPG}"); a("v_add_u32 v9, s14, v5")
    a(f"v_bfe_u32 v12, v0, 3, 2"); a("v_lshlrev_b32 v10, 13, v12"); a(f"v_lshl_add_u32 v10, v{IDX}, 3, v10"); a(f"v_add_u32 v10, {X1G}, v10")
    a(f"v_add_u32 v13, {4*8192}, v10")
    a("v_cmp_eq_u32 s[42:43], 0, v12")
    a("v_mov_b32 v15, s20")
    poll([f"global_load_dwordx4 v[{16+4*i}:{19+4*i}], v9, s[8:9] offset:{1024*i} sc1" for i in range(4)],
         [(16+2*i,17+2*i) for i in range(8)], "R")
    stamp(10)
    treesum(16,4)
    colreduce(16,18,17)
    rnd1("v16","v16"); a(f"v_mul_f32 v16, v16, v{GA}"); rnd1("v16","v16"); a(f"v_add_f32 v16, v16, v{XV}"); rnd1(f"v{X1V}","v16")
    a(f"v_or_b32 v14, s19, v{X1V}")
    a("global_store_dwordx2 v10, v[14:15], s[8:9] sc1"); a("global_store_dwordx2 v13, v[14:15], s[8:9] sc1")
    stamp(11)
    a("s_mul_i32 s14, s13, 7168"); a(f"s_add_u32 s14, s14, {DPG}"); a("v_add_u32 v9, s14, v5"); a("v_add_u32 v10, 0x1000, v9")
    a(f"v_lshlrev_b32 v8, 1, v{IDX}")
    if f_pre: a(f"s_sleep {f_pre}")
    poll([f"global_load_dwordx4 v[{16+4*i}:{19+4*i}], v{9+i//4}, s[8:9] offset:{1024*(i%4)} sc1" for i in range(7)],
         [(16+2*i,17+2*i) for i in range(14)], "F", slp=f_sleep)
    stamp(12)
    treesum(16,7)
    colreduce(16,18,17)
    rnd1("v16","v16"); a(f"v_mul_f32 v16, v16, v{GB}"); rnd1("v16","v16"); a(f"v_add_f32 v16, v16, v{X1V}")
    a("v_cvt_pk_bf16_f32 v16, v16, v16")
    a("s_mov_b64 exec, s[42:43]")
    a("global_store_short v8, v16, s[58:59]")
    a("s_mov_b64 exec, 1")
    a("s_cmp_lg_u32 s13, 0"); a("s_cbranch_scc1 L_NOEP")
    a("global_store_dword v4, v15, s[8:9] sc0 sc1")
    a("L_NOEP:")
    a("s_mov_b64 exec, -1")
    stamp(13)
    a("s_branch L_FIN")
    a("L_CP:")
    a("s_bfe_u32 s14, s76, 0x20004"); a("s_lshl_b32 s13, s14, 4"); a("s_and_b32 s14, s76, 7"); a("s_lshl_b32 s14, s14, 1"); a("s_add_u32 s13, s13, s14"); a("s_bfe_u32 s14, s76, 0x10003"); a("s_add_u32 s13, s13, s14"); a("s_lshr_b32 s14, s76, 6"); a("s_cmp_eq_u32 s14, 2"); a("s_cselect_b32 s13, s13, 99"); a("s_cmp_ge_u32 s13, 56"); a("s_cbranch_scc1 L_FIN")
    a("s_and_b32 s14, s3, 1"); a("s_lshl_b32 s15, s14, 12"); a(f"s_and_b32 s16, s13, {NREP-1}"); a("s_lshl_b32 s16, s16, 13"); a("s_add_u32 s15, s15, s16"); a(f"s_add_u32 s15, s15, {X1G}")
    a("v_lshlrev_b32 v9, 6, v0"); a("v_add_u32 v9, s15, v9")
    a("s_lshl_b32 s14, s14, 10"); a("v_add_u32 v10, s14, v5")
    if c_pre: a(f"s_sleep {c_pre}")
    poll([f"global_load_dwordx4 v[{16+4*i}:{19+4*i}], v9, s[8:9] offset:{16*i} sc1" for i in range(4)],
         [(16+2*i,17+2*i) for i in range(8)], "C", slp=c_sleep)
    stamp(10)
    X=list(range(32,40))
    for i in range(8): a(f"v_and_b32 v{32+i}, 0xffff0000, v{16+2*i}")
    ln_stats(X,40); ln_norm(X,40)
    modulate(X,list(range(OP,OP+8)),list(range(SB,SB+8)),[52,53,54,55],42)
    a(f"ds_write_b128 v10, v[52:55] offset:{L_H}")
    a("s_waitcnt lgkmcnt(0)")
    a("s_barrier")
    a("s_branch L_FIN")

    body=a.text()
    out=HEADER+"; Generated by gen/gen8.py (own generator script).\n"
    out+=f"; @launch grid=(256,1,1) block=(512,1,1) lds={LDS_BYTES}\n"
    out+='.amdgcn_target "amdgcn-amd-amdhsa--gfx950"\n.text\n'
    out+=f".globl {KN}\n.p2align 8\n.type {KN},@function\n"+body
    out+=f'''.section .rodata,"a"
.p2align 6
.amdhsa_kernel {KN}
  .amdhsa_next_free_vgpr 256
  .amdhsa_next_free_sgpr 102
  .amdhsa_accum_offset 256
  .amdhsa_group_segment_fixed_size 0
  .amdhsa_kernarg_size 112
  .amdhsa_user_sgpr_count 2
  .amdhsa_user_sgpr_kernarg_segment_ptr 1
  .amdhsa_system_sgpr_workgroup_id_x 1
  .amdhsa_float_denorm_mode_32 3
.end_amdhsa_kernel
'''
    return out

if __name__=="__main__":
    import argparse
    ap=argparse.ArgumentParser(); ap.add_argument("out"); ap.add_argument("--diag",action="store_true"); ap.add_argument("--opt",default="")
    args=ap.parse_args()
    kw=eval("dict("+args.opt+")")
    open(args.out,"w").write(gen(diag=args.diag,**kw))
```
